```python
import torch

def _softmax(x, axis=-1):
    return torch.softmax(x, dim=axis)
def _gelu(x):
    return torch.nn.functional.gelu(x, approximate="tanh")
def _silu(x):
    return torch.nn.functional.silu(x)
def _sigmoid(x):
    return torch.sigmoid(x)
def _layernorm(x, axis=-1, eps=1e-5):
    m = x.mean(dim=axis, keepdim=True)
    v = x.var(dim=axis, keepdim=True, unbiased=False)
    return (x - m) / torch.sqrt(v + eps)
def _scatter_add(tgt, idx, src, axis=0):
    return tgt.clone().index_add_(axis, idx, src)
def _segment_sum(src, seg, n):
    out = torch.zeros((n,) + src.shape[1:], dtype=src.dtype)
    return out.index_add_(0, seg, src)
def _pad(x, pw):
    flat = tuple(v for pair in reversed(pw) for v in pair)
    return torch.nn.functional.pad(x, flat)

kernel_name = 'gated_mix__linear_kernel_hedgehog__mixer_s_mlp__prompt'

def setup_inputs():

    _w = (lambda a: (lambda t: t.to(torch.bfloat16) if t.is_floating_point() else t)(torch.as_tensor(a)))
    def _A_setup():
        B, S, D, H = 1, 2048, 640, 32
        Dh = D // H
        return {
            "x": _w((lambda *s: torch.randn(*s, dtype=torch.bfloat16) * 0.05)(B, S, D)),
            "wqkv": _w((lambda *s: torch.randn(*s, dtype=torch.bfloat16) * 3.2)(D, 3 * D)),
            "w_phi": _w((lambda *s: torch.randn(*s, dtype=torch.bfloat16) * 3.2)(H, Dh, Dh) * (Dh ** -0.5)),
            "wo": _w((lambda *s: torch.randn(*s, dtype=torch.bfloat16) * 1.6)(D, D)),
        }
    _A_in = _A_setup()

    def _B_setup():
        B, S, D, F = 1, 2048, 640, 1536
        return {
            "x":  _w((lambda *s: torch.randn(*s, dtype=torch.bfloat16) * 0.05)(B, S, D)),
            "w1": _w((lambda *s: torch.randn(*s, dtype=torch.bfloat16) * 3.2)(D, D) * (D ** -0.5)),
            "w2": _w((lambda *s: torch.randn(*s, dtype=torch.bfloat16) * 3.2)(D, D) * (D ** -0.5)),
            "w3": _w((lambda *s: torch.randn(*s, dtype=torch.bfloat16) * 3.2)(D, F) * (D ** -0.5)),
            "w4": _w((lambda *s: torch.randn(*s, dtype=torch.bfloat16) * 3.2)(F, D) * (F ** -0.5)),
        }
    _B_in = _B_setup()

    return {
        "A_x": _A_in["x"],
        "A_wqkv": _A_in["wqkv"],
        "A_w_phi": _A_in["w_phi"],
        "A_wo": _A_in["wo"],
        "B_x": _B_in["x"],
        "B_w1": _B_in["w1"],
        "B_w2": _B_in["w2"],
        "B_w3": _B_in["w3"],
        "B_w4": _B_in["w4"],
        "gate_w": _w((lambda *s: torch.randn(*s, dtype=torch.bfloat16) * 0.05)(640) * 16.0),
    }

def reference(A_x, A_wqkv, A_w_phi, A_wo, B_x, B_w1, B_w2, B_w3, B_w4, gate_w):
    def _A_ref(x, wqkv, w_phi, wo):
        B, S, D = x.shape
        H = 32; Dh = D // H
        qkv = (lambda x, *d: x.permute(*d))((x @ wqkv).reshape(B, S, 3, H, Dh), 2, 0, 3, 1, 4)
        q, k, v = qkv[0], qkv[1], qkv[2]
        pq = torch.einsum("bhsd,hdf->bhsf", q, w_phi)
        pk = torch.einsum("bhsd,hdf->bhsf", k, w_phi)
        phi_q = torch.concatenate([_softmax(pq, axis=-1), _softmax(-pq, axis=-1)], axis=-1)
        phi_k = torch.concatenate([_softmax(pk, axis=-1), _softmax(-pk, axis=-1)], axis=-1)
        kv = torch.einsum("bhsf,bhsd->bhfd", phi_k, v)
        z  = torch.einsum("bhsf->bhf", phi_k)
        num = torch.einsum("bhqf,bhfd->bhqd", phi_q, kv)
        den = torch.einsum("bhqf,bhf->bhq", phi_q, z)[..., None] + 1e-6
        o = num / den
        return (lambda x, *d: x.permute(*d))(o, 0, 2, 1, 3).reshape(B, S, D) @ wo

    def _B_ref(x, w1, w2, w3, w4):
        B, S, D = x.shape
        h = _gelu(_layernorm(x, axis=-1) @ w1)
        c = D // 4
        g0 = _pad(h[:, :, 0*c:1*c], ((0, 0), (1, 0), (0, 0)))[:, :S, :]
        g1 = _pad(h[:, :, 1*c:2*c], ((0, 0), (0, 1), (0, 0)))[:, 1:, :]
        g2 = _pad(h[:, :, 2*c:3*c], ((0, 0), (2, 0), (0, 0)))[:, :S, :]
        g3 = _pad(h[:, :, 3*c:   ], ((0, 0), (0, 2), (0, 0)))[:, 2:, :]
        hs = torch.concatenate([g0, g1, g2, g3], axis=-1) @ w2
        x1 = x + hs
        h2 = _gelu(_layernorm(x1, axis=-1) @ w3) @ w4
        return x1 + h2

    x = A_x
    g = _sigmoid((x * gate_w).sum(-1, keepdims=True))
    a = _A_ref(x, A_wqkv, A_w_phi, A_wo)
    b = _B_ref(x, B_w1, B_w2, B_w3, B_w4)
    return g * a + (1 - g) * b
```

```python
import re

class Pool:
    def __init__(self, name, n, start=0):
        self.name = name; self.n = n
        self.used = [None]*n
        for i in range(start): self.used[i] = "reserved"
        self.hi = start
    def alloc(self, cnt, tag, align=None, at=None):
        if align is None: align = 1 if cnt == 1 else 2
        if at is not None:
            assert all(self.used[i] is None for i in range(at, at+cnt)), (self.name, tag, at, [self.used[i] for i in range(at, at+cnt)])
            b = at
        else:
            b = None
            for s in range(0, self.n-cnt+1, align):
                if all(self.used[i] is None for i in range(s, s+cnt)):
                    b = s; break
            assert b is not None, f"out of {self.name} regs for {tag} ({cnt}); used={self.summary()}"
        for i in range(b, b+cnt): self.used[i] = tag
        self.hi = max(self.hi, b+cnt)
        return b
    def free(self, b, cnt):
        for i in range(b, b+cnt):
            assert self.used[i] is not None
            self.used[i] = None
    def summary(self):
        d = {}
        for u in self.used:
            if u: d[u] = d.get(u, 0)+1
        return d

class R:
    def __init__(self, k, base, n): self.k = k; self.b = base; self.n = n
    def __getitem__(self, i):
        if isinstance(i, slice):
            a = i.start or 0; e = i.stop if i.stop is not None else self.n
            assert 0 <= a < e <= self.n, (a, e, self.n)
            return R(self.k, self.b+a, e-a)
        assert 0 <= i < self.n, (i, self.n)
        return R(self.k, self.b+i, 1)
    def __str__(self):
        return f"{self.k}{self.b}" if self.n == 1 else f"{self.k}[{self.b}:{self.b+self.n-1}]"
    __repr__ = __str__
    def __format__(self, spec): return str(self)

REG_RE = re.compile(r'(?<![\w.])([vas])(?:(\d+)|\[(\d+):(\d+)\])(?![\w])')
def regs_of(op):
    out = []
    for m in REG_RE.finditer(op):
        k = m.group(1)
        if m.group(2) is not None: out.append((k, int(m.group(2))))
        else: out += [(k, i) for i in range(int(m.group(3)), int(m.group(4))+1)]
    if re.search(r'(?<![\w])vcc(_lo|_hi)?(?![\w])', op): out += [("s", "vcc")]
    if re.search(r'(?<![\w])exec(_lo|_hi)?(?![\w])', op): out += [("s", "exec")]
    if re.search(r'(?<![\w])m0(?![\w])', op): out += [("s", "m0")]
    return out

TRANS = ("v_exp_f32", "v_log_f32", "v_rcp_f32", "v_rsq_f32", "v_sqrt_f32", "v_sin_f32", "v_cos_f32")
class Ins:
    def __init__(self, text):
        self.text = text
        t = text.split(";")[0].strip()
        self.label = t.endswith(":")
        self.op = t.split()[0] if t else ""
        rest = t[len(self.op):].strip()
        ops = [o.strip() for o in re.split(r',(?![^\[]*\])', rest)] if rest else []
        self.ops = ops
        op = self.op
        self.cls = "other"; self.w = []; self.r = []
        if self.label or not op or op.startswith("."):
            self.cls = "label"; return
        if op.startswith("v_mfma"):
            self.cls = "mfma"; self.w = regs_of(ops[0]); self.ra = regs_of(ops[1]) + regs_of(ops[2]); self.rc = regs_of(ops[3]); self.r = self.ra + self.rc
        elif op.startswith("v_"):
            self.cls = "valu"
            base = op.replace("_e32", "").replace("_e64", "")
            self.trans = base in TRANS
            if base.startswith("v_cmp"):
                self.w = regs_of(ops[0]); self.r = sum((regs_of(o) for o in ops[1:]), [])
            elif base.startswith("v_permlane") and "swap" in base:
                self.w = regs_of(ops[0]) + regs_of(ops[1]); self.r = list(self.w)
            elif base in ("v_add_co_u32", "v_sub_co_u32", "v_addc_co_u32"):
                self.w = regs_of(ops[0]) + regs_of(ops[1]); self.r = sum((regs_of(o) for o in ops[2:]), [])
            else:
                self.w = regs_of(ops[0]); self.r = sum((regs_of(o) for o in ops[1:]), [])
                if base in ("v_fmac_f32", "v_dot2c_f32_bf16", "v_writelane_b32"): self.r += self.w
                if base == "v_cndmask_b32" and len(ops) == 3: self.r += [("s", "vcc")]
            self.lane = base in ("v_readfirstlane_b32", "v_readlane_b32")
            self.perm = base.startswith("v_permlane")
            self.dpp = "dpp" in op or "row_" in rest or "quad_perm" in rest
        elif op.startswith("ds_"):
            self.cls = "ds"
            if op.startswith("ds_read") or op.startswith("ds_bperm"):
                self.w = regs_of(ops[0]); self.r = sum((regs_of(o) for o in ops[1:]), [])
            else:
                self.r = sum((regs_of(o) for o in ops), [])
                self.data = sum((regs_of(o) for o in ops[1:]), [])
        elif op.startswith("buffer_") or op.startswith("global_"):
            self.cls = "vmem"
            lds = re.search(r'\blds\b', rest) is not None
            self.lds = lds
            if "load" in op and not lds:
                self.w = regs_of(ops[0]); self.r = sum((regs_of(o) for o in ops[1:]), [])
            else:
                self.r = sum((regs_of(o) for o in ops), [])
                if lds: self.r += [("s", "m0")]
            self.wide_store = ("store" in op) and ("x3" in op or "x4" in op)
            if "store" in op:
                self.data = regs_of(ops[0]) if op.startswith("buffer_") else regs_of(ops[1])
        elif op.startswith("s_"):
            self.cls = "salu"
            if op in ("s_waitcnt", "s_barrier", "s_nop", "s_endpgm", "s_sleep", "s_setprio") or op.startswith("s_cbranch") or op == "s_branch":
                pass
            elif op.startswith("s_cmp"):
                self.r = sum((regs_of(o) for o in ops), [])
            else:
                self.w = regs_of(ops[0]); self.r = sum((regs_of(o) for o in ops[1:]), [])
    def states(self):
        if self.cls == "label": return 0
        if self.op == "s_nop": return int(self.ops[0]) + 1
        return 1

def hazard_pass(lines, mfma_pass=4):
    RAW_D = {4: 8, 8: 12}; OVL_C = {4: 6, 8: 10}; WAR_C = {4: 3, 8: 7}
    out = []; hist = []
    nn = 0
    def dist_back(pred, maxd):
        d = 0
        for ins in reversed(hist):
            if pred(ins): return d
            d += ins.states()
            if d >= maxd: return None
        return None
    for text in lines:
        ins = Ins(text)
        need = 0
        def req(pred, n):
            nonlocal need
            d = dist_back(pred, n)
            if d is not None and n - d > need: need = n - d
        rs = set(ins.r); ws = set(ins.w)
        vr = {x for x in rs if x[0] in "va"}; vw = {x for x in ws if x[0] in "va"}
        sr = {x for x in rs if x[0] == "s"}
        def passes(p): return 8 if "32x32" in p.op else 4
        if ins.cls == "mfma":
            req(lambda p: p.cls == "valu" and set(p.w) & vr, 2)
            ra = set(ins.ra); rc = set(ins.rc)
            for P in (4, 8):
                req(lambda p: p.cls == "mfma" and passes(p) == P and set(p.w) & ra, RAW_D[P])
                req(lambda p: p.cls == "mfma" and passes(p) == P and (set(p.w) & rc) and (p.w != ins.rc or passes(ins) != P), OVL_C[P])
                req(lambda p: p.cls == "mfma" and passes(p) == P and (set(p.w) & vw) and not (set(p.w) & rc), OVL_C[P])
        elif ins.cls in ("valu", "ds", "vmem"):
            for P in (4, 8):
                req(lambda p: p.cls == "mfma" and passes(p) == P and set(p.w) & (vr | vw), RAW_D[P])
                if ins.cls == "valu":
                    req(lambda p: p.cls == "mfma" and passes(p) == P and set(p.rc) & vw, WAR_C[P])
            if ins.cls == "valu":
                if not ins.trans: req(lambda p: p.cls == "valu" and p.trans and set(p.w) & vr, 1)
                if ins.lane: req(lambda p: p.cls == "valu" and set(p.w) & vr, 1)
                if ins.perm or ins.dpp: req(lambda p: p.cls == "valu" and set(p.w) & vr, 2)
                req(lambda p: p.cls == "valu" and {x for x in p.w if x[0] == "s"} & sr, 2)
                req(lambda p: p.cls in ("vmem",) and getattr(p, "wide_store", False) and set(p.data) & vw, 2)
                req(lambda p: p.cls == "ds" and hasattr(p, "data") and len(p.data) >= 3 and set(p.data) & vw, 2)
                req(lambda p: p.cls == "valu" and ("sdwa" in p.op) and set(p.w) & (vr | vw), 1)
            else:
                req(lambda p: p.cls == "valu" and p.trans and set(p.w) & vr, 1)
                req(lambda p: p.cls in ("vmem",) and getattr(p, "wide_store", False) and set(p.data) & vw, 1)
            if ins.cls == "vmem":
                req(lambda p: p.cls == "valu" and {x for x in p.w if x[0] == "s"} & sr, 5)
                if ins.lds: req(lambda p: p.cls == "salu" and ("s", "m0") in p.w, 1)
        elif ins.cls == "salu":
            req(lambda p: p.cls == "valu" and {x for x in p.w if x[0] == "s"} & sr, 1)
            if ins.op.startswith("s_cbranch_vcc"):
                req(lambda p: p.cls == "valu" and ("s", "vcc") in p.w, 1)
        while need > 0:
            n = min(need, 16)
            t = f"s_nop {n-1}"
            out.append("    " + t); hist.append(Ins(t)); need -= n; nn += 1
        out.append(text); hist.append(ins)
        if len(hist) > 64: hist = hist[-40:]
    return out, nn

class K:
    def __init__(self):
        self.lines = []; self.tail = []
        self.v = Pool("v", 256, 1); self.a = Pool("a", 256); self.s = Pool("s", 100, 3)
        self.nvm = 0; self.vm_done = 0
        self.nds = 0; self.ds_done = 0
        self.cyc = 0
        self.hook = None; self._inhook = False
        self.nlab = 0
    def V(self, n, tag, **kw): return R("v", self.v.alloc(n, tag, **kw), n)
    def A(self, n, tag, **kw): return R("a", self.a.alloc(n, tag, **kw), n)
    def S(self, n, tag, **kw): return R("s", self.s.alloc(n, tag, **kw), n)
    def free(self, *rs):
        for r in rs: {"v": self.v, "a": self.a, "s": self.s}[r.k].free(r.b, r.n)
    def lab(self, p="L"):
        self.nlab += 1; return f"{p}{self.nlab}"
    def e(self, text):
        for t in text.strip().split("\n"):
            t = t.strip()
            if not t: continue
            self.lines.append(t if t.endswith(":") else "    " + t)
            op = t.split()[0]
            if op.startswith("v_mfma"): self.cyc += 16
            elif op.replace("_e64", "").replace("_e32", "") in TRANS: self.cyc += 8
            elif t.endswith(":") or t.startswith(";"): pass
            else: self.cyc += 4
            if self.hook and not self._inhook and not t.endswith(":") and not t.startswith(";"):
                self._inhook = True; self.hook(self); self._inhook = False
    def c(self, text): self.lines.append("    ; " + text)
    def vm(self, text):
        h = self._inhook; self._inhook = True
        self.e(text); self._inhook = h
        self.nvm += 1; return self.nvm
    def ds(self, text):
        h = self._inhook; self._inhook = True
        self.e(text); self._inhook = h
        self.nds += 1; return self.nds
    def wait(self, vm=None, ds=None):
        parts = []
        if vm is not None and vm > self.vm_done:
            n = min(self.nvm - vm, 63); parts.append(f"vmcnt({n})"); self.vm_done = self.nvm - n
        if ds is not None and ds > self.ds_done:
            n = min(self.nds - ds, 15); parts.append(f"lgkmcnt({n})"); self.ds_done = self.nds - n
        if parts:
            h = self._inhook; self._inhook = True
            self.e("s_waitcnt " + " ".join(parts)); self._inhook = h
    def wait_all_ds(self): self.wait(ds=self.nds)
    def wait_all_vm(self): self.wait(vm=self.nvm)

class Lds:
    def __init__(self, size): self.size = size; self.used = {}
    def alloc(self, n, tag, at=None, top=False):
        if at is not None:
            assert self.fits(at, n), (tag, at, n, self.used); self.used[tag] = (at, n); return at
        cands = sorted({0} | {a+l for a, l in self.used.values()})
        if top: cands = sorted({self.size-n} | {a-n for a, l in self.used.values()}, reverse=True)
        for c in cands:
            if c >= 0 and self.fits(c, n):
                self.used[tag] = (c, n); return c
        return None
    def fits(self, at, n):
        if at + n > self.size: return False
        return all(at + n <= a or a + l <= at for a, l in self.used.values())
    def free(self, tag): del self.used[tag]
```

```python
import sys, struct, math
from contextlib import contextmanager
from asmb import *

NAME = "gated_mix__linear_kernel_hedgehog__mixer_s_mlp__prompt_kernel"
def f2u(x): return struct.unpack("<I", struct.pack("<f", x))[0]

EPOCH = 0
F_PACK1, F_PACK2, F_H, F_X1, F_O, F_H2A, F_H2B = 0x1000, 0x2000, 0x3000, 0x4000, 0x5000, 0x6000, 0x7000
F_KVP, F_KVF, STAMPS = 0x8000, 0x10000, 0x20000
SZ80 = 819200; SZBIG = 1966080; SZACT = 2621440
PW_K = 0x100000; PW_V = PW_K + SZ80; PW_2 = PW_V + SZ80; PW_Q = PW_2 + SZ80; PW_O = PW_Q + SZ80
PW_4 = PW_O + SZ80; PW_3 = PW_4 + SZBIG
HS = PW_3 + SZBIG; X1 = HS + SZACT; OO = X1 + SZACT; H2 = OO + SZACT
KVP = H2 + 6291456; KVF = KVP + 8*32*14336; WS_USED = KVF + 8*32*512
OOB = 0x40000000
LDS_SIZE = 163840
L_ZERO = 159744; L_STAT = 160768; L_GX = 162816
L_SCR = 118784; SCR_SIZE = 40960
L_KVT = L_SCR + 32768; L_CS = L_KVT + 6720+64
assert L_CS % 16 == 0 and L_CS + 768 <= L_ZERO

class Cfg:
    stamps = False
    stop = None
    spin = 200000
    fine = ()
    early = False

def build(cfg):
    k = K(); e = k.e
    lds = Lds(LDS_SIZE)
    tail = []
    @contextmanager
    def nohook():
        h = k._inhook; k._inhook = True
        yield
        k._inhook = h
    @contextmanager
    def lend(*rs):
        for r in rs: k.free(r)
        yield
        for r in rs: k.v.alloc(r.n, "relent", at=r.b)
    stamp_regs = []
    def stamp(name):
        if not cfg.stamps: return
        n = len(stamp_regs)
        if n == 0:
            stamp.r = [k.S(2, "stamp", at=96), k.S(2, "stamp", at=98)]; stamp.v = R("v", 0, 1)
        else:
            if n <= 2 or (cfg.early and n < 14): e("s_waitcnt lgkmcnt(0)")
            e(f"v_writelane_b32 {stamp.v}, {stamp.r[(n-1) & 1][0]}, {n-1}")
        stamp_regs.append((name, None))
        e(f"s_memtime {stamp.r[n & 1]}")
    def barrier():
        with nohook(): e("s_barrier")

    P = R("s", k.s.alloc(16, "ptr", at=16), 16); P2 = R("s", k.s.alloc(8, "ptr2", at=32), 8); PWS = R("s", k.s.alloc(2, "pws", at=40), 2)
    pX, pQKV, pPHI, pWO, pW1, pW2, pW3 = P[0:2], P[2:4], P[4:6], P[6:8], P[10:12], P[12:14], P[14:16]
    pW4, pGATE, pOUT = P2[0:2], P2[2:4], P2[4:6]
    dX = k.S(4, "dX", align=4); dW1 = k.S(4, "dW1", align=4); dPK = k.S(4, "dPK", align=4); dWS = k.S(4, "dWS", align=4)
    sW, sM, sHK, sR, sJ, sCH, sPI, sIDX, sTAG, sRF0, sRF1 = [k.S(1, n) for n in "sW sM sHK sR sJ sCH sPI sIDX sTAG sRF0 sRF1".split()]
    sT = [k.S(1, f"sT{i}") for i in range(8)]
    sDT = k.S(1, "sDT")
    sJW, sJWkv, sJW3, sJW4, sW5K, sW6K, sFL, sXB0, sXB1 = [k.S(1, n) for n in "sJW sJWkv sJW3 sJW4 sW5K sW6K sFL sXB0 sXB1".split()]
    sW0 = k.S(1, "sW0")
    sC = k.S(2, "sC"); sL2E = k.S(2, "sL2E")
    def srd(d, p, size):
        e(f"s_mov_b32 {d[0]}, {p[0]}\ns_mov_b32 {d[1]}, {p[1]}\ns_mov_b32 {d[2]}, {size}\ns_mov_b32 {d[3]}, 0x20000")

    e(f"s_cmp_ge_u32 s2, 256\ns_cbranch_scc1 Lend")
    e(f"s_load_dwordx16 {P}, s[0:1], 0\ns_load_dwordx8 {P2}, s[0:1], 64\ns_load_dwordx2 {PWS}, s[0:1], 96")
    stamp("start")
    vL = k.V(1, "vL"); vL16 = k.V(1, "vL16"); vS = k.V(1, "vS"); vG = k.V(1, "vG")
    t = k.V(8, "ptmp")
    e(f"v_and_b32 {vL}, 63, v0\nv_lshrrev_b32 {t[0]}, 6, v0\nv_lshlrev_b32 {vL16}, 4, {vL}\nv_readfirstlane_b32 {sW}, {t[0]}")
    e(f"v_and_b32 {vS}, 15, {vL}\nv_lshrrev_b32 {vG}, 4, {vL}")
    e(f"""s_and_b32 {sT[0]}, s2, 7
          s_lshr_b32 {sIDX}, s2, 3
          s_lshr_b32 {sT[1]}, {sT[0]}, 1
          s_and_b32 {sCH}, {sT[0]}, 1
          s_lshl_b32 {sR}, {sT[1]}, 3
          s_lshr_b32 {sT[2]}, {sIDX}, 2
          s_add_u32 {sR}, {sR}, {sT[2]}
          s_lshl_b32 {sJ}, {sCH}, 2
          s_and_b32 {sT[2]}, {sIDX}, 3
          s_add_u32 {sJ}, {sJ}, {sT[2]}
          s_lshl_b32 {sPI}, {sT[1]}, 5
          s_add_u32 {sPI}, {sPI}, {sIDX}
          s_and_b32 {sM}, {sW}, 1
          s_lshr_b32 {sHK}, {sW}, 1
          s_lshl_b32 {sRF0}, {sM}, 1
          s_add_u32 {sRF1}, {sRF0}, 1
          s_add_u32 {sRF0}, {sRF0}, {sHK}
          s_sub_u32 {sRF1}, {sRF1}, {sHK}
          s_cmp_eq_u32 {sW}, 0
          s_cselect_b32 {sW0}, 0, {OOB}
          s_mul_i32 {sW5K}, {sW}, 5120
          s_mul_i32 {sW6K}, {sW}, 6144""")
    sSH = k.S(1, "sSH"); sOFF0 = k.S(1, "sOFF0"); sRB = k.S(1, "sRB")
    e(f"""s_lshr_b32 {sT[0]}, {sJ}, 2
          s_add_u32 {sSH}, {sT[0]}, 1
          s_sub_u32 {sT[1]}, 0, {sSH}
          s_bitcmp1_b32 {sJ}, 1
          s_cselect_b32 {sSH}, {sT[1]}, {sSH}
          s_cselect_b32 {sOFF0}, 0, 8
          s_lshl_b32 {sRB}, {sR}, 6
          s_sub_u32 {sRB}, {sRB}, {sOFF0}""")
    vXD = k.V(1, "vXD")
    e(f"""v_lshrrev_b32 {t[0]}, 3, {vL}
          v_and_b32 {t[1]}, 7, {vL}
          v_xor_b32 {t[1]}, {t[1]}, {t[0]}
          v_mul_u32_u24 {t[0]}, 1280, {t[0]}
          v_lshl_add_u32 {vXD}, {t[1]}, 4, {t[0]}""")
    vTX = k.V(1, "vTX"); vTW = k.V(1, "vTW")
    e(f"""v_mul_u32_u24 {t[0]}, 6554, {vL}
          v_lshrrev_b32 {t[0]}, 16, {t[0]}
          v_mul_u32_u24 {t[1]}, 10, {t[0]}
          v_sub_u32 {t[1]}, {vL}, {t[1]}
          v_mul_u32_u24 {t[0]}, 1280, {t[0]}
          v_lshl_add_u32 {vTX}, {t[1]}, 7, {t[0]}
          v_mul_u32_u24 {t[0]}, 13108, {vL}
          v_lshrrev_b32 {t[0]}, 16, {t[0]}
          v_mul_u32_u24 {t[1]}, 5, {t[0]}
          v_sub_u32 {t[1]}, {vL}, {t[1]}
          v_mul_u32_u24 {t[0]}, 1280, {t[0]}
          v_lshl_add_u32 {vTW}, {t[1]}, 7, {t[0]}""")

    sPitch, sSrc, sDst, sDstr, sCm, sCm2, sIst, sSlB, sLast, sGv = [k.S(1, n) for n in "sPitch sSrc sDst sDstr sCm sCm2 sIst sSlB sLast sGv".split()]
    def sel_srd(cond_text, p, size):
        e(f"{cond_text}\ns_cselect_b32 {dPK[0]}, {p[0]}, {dPK[0]}\ns_cselect_b32 {dPK[1]}, {p[1]}, {dPK[1]}\ns_cselect_b32 {dPK[2]}, {size}, {dPK[2]}")
    def sel(cond, pairs):
        e(cond)
        for d, val in pairs: e(f"s_cselect_b32 {d}, {val}, {d}")
    HEAD = [(sCm, 40), (sCm2, 40), (sIst, 16)]; GR80 = [(sCm, 16), (sCm2, 8), (sIst, 64)]
    def pack_common80(kk, colbase_reg):
        pass
    def pack_params(which):
        kk, col, tp, T = sT[0], sT[1], sT[2], sT[3]
        e(f"s_mul_i32 {col}, {sCH}, 640")
        e(f"s_mov_b32 {sSlB}, 160\ns_mov_b32 {sGv}, 40\ns_mov_b32 {T}, 20")
        srd(dPK, pQKV, 2457600)
        e(f"s_mov_b32 {sPitch}, 3840\ns_mov_b32 {sCm}, 40\ns_mov_b32 {sCm2}, 40\ns_mov_b32 {sIst}, 16\ns_mov_b32 {kk}, {sPI}")
        if which == 1:
            e(f"s_mov_b32 {sDst}, {PW_K}\ns_mov_b32 {sT[4]}, 1280")
            e(f"s_sub_u32 {sT[5]}, {sPI}, 40")
            sel(f"s_cmp_ge_u32 {sPI}, 40", [(kk, sT[5]), (sDst, PW_V), (sT[4], 2560)])
            e(f"s_sub_u32 {sT[5]}, {sPI}, 80")
            sel(f"s_cmp_ge_u32 {sPI}, 80", [(kk, sT[5]), (sDst, PW_2), (sT[4], 0), (sPitch, 1280)] + GR80)
            sel_srd(f"s_cmp_ge_u32 {sPI}, 80", pW2, SZ80)
            e(f"s_add_u32 {col}, {col}, {sT[4]}\ns_lshr_b32 {tp}, {kk}, 1")
        elif which == 2:
            e(f"s_mov_b32 {sDst}, {PW_Q}")
            e(f"s_sub_u32 {sT[5]}, {sPI}, 40")
            sel(f"s_cmp_ge_u32 {sPI}, 40", [(kk, sT[5]), (sDst, PW_O), (sPitch, 1280)] + GR80)
            sel_srd(f"s_cmp_ge_u32 {sPI}, 40", pWO, SZ80)
            e(f"s_sub_u32 {sT[5]}, {sPI}, 80")
            sel(f"s_cmp_ge_u32 {sPI}, 80", [(kk, sT[5]), (sDst, PW_4), (T, 48)])
            sel_srd(f"s_cmp_ge_u32 {sPI}, 80", pW4, SZBIG)
            e(f"s_lshr_b32 {tp}, {kk}, 1")
            w4_order(tp, f"s_cmp_ge_u32 {sPI}, 80")
        else:
            srd(dPK, pW4, SZBIG)
            e(f"s_mov_b32 {sDst}, {PW_4}\ns_mov_b32 {sPitch}, 1280\ns_mov_b32 {T}, 48\ns_add_u32 {kk}, {sPI}, 48")
            for d, val in GR80: e(f"s_mov_b32 {d}, {val}")
            e(f"s_lshr_b32 {tp}, {kk}, 1")
            w4_order(tp, f"s_cmp_lt_u32 {sPI}, 48")
            u, cg = sT[4], sT[5]
            e(f"s_sub_u32 {u}, {sPI}, 48\ns_lshl_b32 {cg}, {sCH}, 1\ns_sub_u32 {sT[6]}, {u}, 40\ns_add_u32 {sT[7]}, {cg}, 1")
            sel(f"s_cmp_ge_u32 {sPI}, 88", [(u, sT[6]), (cg, sT[7])])
            e(f"s_mul_i32 {sT[6]}, {cg}, 768\ns_lshr_b32 {sT[7]}, {u}, 1")
            sel(f"s_cmp_ge_u32 {sPI}, 48", [(kk, u), (col, sT[6]), (tp, sT[7]), (sPitch, 3072), (sSlB, 192), (sGv, 48), (sCm2, 16), (sDst, PW_3)])
            sel_srd(f"s_cmp_ge_u32 {sPI}, 48", pW3, SZBIG)
        e(f"s_lshl_b32 {sSrc}, {kk}, 4\ns_mul_i32 {sSrc}, {sSrc}, {sPitch}\ns_add_u32 {sSrc}, {sSrc}, {col}")
        e(f"s_mul_i32 {sDstr}, {T}, 5120\ns_lshl_b32 {sT[6]}, {sCH}, 2\ns_mul_i32 {sT[6]}, {sT[6]}, {sDstr}\ns_mul_i32 {sT[7]}, {tp}, 5120\ns_add_u32 {sT[6]}, {sT[6]}, {sT[7]}")
        if which == 3:
            e(f"s_mul_i32 {sT[4]}, {sT[5]}, {4*122880}\ns_mul_i32 {sT[7]}, {tp}, 6144\ns_add_u32 {sT[4]}, {sT[4]}, {sT[7]}")
            sel(f"s_cmp_ge_u32 {sPI}, 48", [(sT[6], sT[4]), (sDstr, 122880)])
        e(f"s_and_b32 {sT[7]}, {kk}, 1\ns_lshl_b32 {sT[7]}, {sT[7]}, 9\ns_add_u32 {sDst}, {sDst}, {sT[6]}\ns_add_u32 {sDst}, {sDst}, {sT[7]}")
        e(f"s_cmp_eq_u32 {sHK}, 0\ns_cselect_b32 {sLast}, 4096, {OOB}")
        if which == 3: sel(f"s_cmp_ge_u32 {sPI}, 48", [(sLast, 4096)])
        if which == 1: sel(f"s_cmp_ge_u32 {sPI}, 120", [(sSrc, OOB), (sDst, OOB)])
    def w4_order(tp, cond):
        a, b, c = sT[4], sT[5], sT[6]
        e(f"""s_mul_i32 {a}, {tp}, 43
              s_lshr_b32 {a}, {a}, 8
              s_mul_i32 {b}, {a}, 6
              s_sub_u32 {b}, {tp}, {b}
              s_mul_i32 {a}, {a}, 3
              s_add_u32 {a}, {a}, {b}
              s_add_u32 {c}, {a}, 21
              s_cmp_ge_u32 {b}, 3
              s_cselect_b32 {a}, {c}, {a}""")
        sel(cond, [(tp, a)])
    assert all((t_*43) >> 8 == t_//6 for t_ in range(48))
    def pack_dma(gpr, stage):
        magic = -(-65536//gpr); assert all((q*magic) >> 16 == q//gpr for q in range(768))
        tv = k.V(3, "pkd")
        tok = None
        for i in range(3):
            e(f"s_lshl_b32 {sT[0]}, {sW}, 6\ns_add_u32 {sT[0]}, {sT[0]}, {256*i}")
            e(f"""v_add_u32 {tv[0]}, {sT[0]}, {vL}
                  v_mul_u32_u24 {tv[1]}, {magic}, {tv[0]}
                  v_lshrrev_b32 {tv[1]}, 16, {tv[1]}
                  v_mul_u32_u24 {tv[2]}, {gpr}, {tv[1]}
                  v_sub_u32 {tv[0]}, {tv[0]}, {tv[2]}
                  v_mul_u32_u24 {tv[1]}, {sPitch}, {tv[1]}""")
            if gpr == 48:
                e(f"v_cmp_gt_u32 vcc, {sGv}, {tv[0]}\nv_lshl_add_u32 {tv[1]}, {tv[0]}, 4, {tv[1]}\nv_mov_b32 {tv[2]}, {OOB}\nv_cndmask_b32 {tv[1]}, {tv[2]}, {tv[1]}, vcc")
            else:
                e(f"v_lshl_add_u32 {tv[1]}, {tv[0]}, 4, {tv[1]}")
            e(f"s_lshl_b32 {sT[0]}, {sW}, 10\ns_add_u32 {sT[0]}, {sT[0]}, {stage + 4096*i}\ns_mov_b32 {sT[1]}, {sSrc}")
            if gpr == 40 and i == 2:
                sel(f"s_cmp_ge_u32 {sW}, 2", [(sT[0], LDS_SIZE), (sT[1], OOB)])
            e(f"s_mov_b32 m0, {sT[0]}")
            tok = k.vm(f"buffer_load_dwordx4 {tv[1]}, {dPK}, {sT[1]} offen lds")
        k.free(tv)
        return tok
    class PackAddr: pass
    def pack_addr(gpr, stage):
        rowb = gpr*16
        pa = PackAddr(); pa.rowb = rowb
        pa.a = k.V(3, "pka"); pa.st = k.V(1, "pks"); pa.dst = k.S(1, "pkdst"); pa.dst2 = k.S(1, "pkdst2")
        tv = k.V(4, "pkt")
        e(f"""v_lshrrev_b32 {tv[0]}, 5, {vL}
              s_lshl_b32 {sT[0]}, {sM}, 1
              v_add_u32 {tv[0]}, {sT[0]}, {tv[0]}
              v_bfe_u32 {tv[1]}, {vL}, 4, 1
              v_bfe_u32 {tv[2]}, {vL}, 2, 2
              v_lshl_add_u32 {tv[1]}, {tv[1]}, 3, {tv[2]}
              v_mul_u32_u24 {tv[1]}, {rowb}, {tv[1]}
              v_mul_u32_u24 {tv[2]}, {sSlB}, {tv[0]}
              s_lshl_b32 {sT[0]}, {sHK}, 3
              s_add_u32 {sT[0]}, {sT[0]}, {stage}
              v_add3_u32 {tv[1]}, {tv[1]}, {tv[2]}, {sT[0]}
              v_and_b32 {tv[2]}, 3, {vL}
              v_mad_u32_u24 {pa.a[0]}, {tv[2]}, {sCm}, {tv[1]}
              v_add_u32 {pa.a[1]}, {sIst}, {pa.a[0]}
              v_mad_u32_u24 {pa.a[2]}, {tv[2]}, {sCm2}, {tv[1]}
              s_lshl_b32 {sT[0]}, {sIst}, 1
              v_add_u32 {pa.a[2]}, {sT[0]}, {pa.a[2]}
              v_mul_u32_u24 {tv[0]}, {sDstr}, {tv[0]}
              v_and_b32 {tv[2]}, 31, {vL}
              v_lshl_add_u32 {tv[0]}, {tv[2]}, 4, {tv[0]}
              s_lshl_b32 {sT[0]}, {sHK}, 10
              v_add_u32 {pa.st}, {sT[0]}, {tv[0]}
              s_mov_b32 {pa.dst}, {sDst}
              s_add_u32 {pa.dst2}, {sDst}, {sLast}""")
        k.free(tv)
        return pa
    def pack_do(pa):
        d = k.V(12, "pkdata")
        toks = []
        for i in range(3):
            k.ds(f"ds_read_b64_tr_b16 {d[4*i:4*i+2]}, {pa.a[i]}")
            toks.append(k.ds(f"ds_read_b64_tr_b16 {d[4*i+2:4*i+4]}, {pa.a[i]} offset:{4*pa.rowb}"))
        tok = None
        for i in range(3):
            k.wait(ds=toks[i])
            if i < 2: tok = k.vm(f"buffer_store_dwordx4 {d[4*i:4*i+4]}, {pa.st}, {dWS}, {pa.dst} offen offset:{2048*i} sc1")
            else: tok = k.vm(f"buffer_store_dwordx4 {d[4*i:4*i+4]}, {pa.st}, {dWS}, {pa.dst2} offen sc1")
        e("s_nop 1")
        k.free(d, pa.a, pa.st, pa.dst, pa.dst2)
        return tok

    e("s_waitcnt lgkmcnt(0)")
    srd(dX, pX, SZACT); srd(dW1, pW1, SZ80); srd(dWS, PWS, WS_USED)
    e(f"s_load_dword {sTAG}, {PWS}, 0")
    k.free(P[0:2], P[8:12])
    stamp("karg")
    vJ = k.V(2, "vjunk")
    e(f"""s_and_b32 {sT[0]}, {sIDX}, 3
          s_lshl_b32 {sT[0]}, {sT[0]}, 2
          s_add_u32 {sT[0]}, {sT[0]}, {sW}
          s_lshl_b32 {sT[0]}, {sT[0]}, 2
          s_lshl_b32 {sT[1]}, {sR}, 6
          s_add_u32 {sT[0]}, {sT[0]}, {sT[1]}
          s_mul_i32 {sT[0]}, {sT[0]}, 1280
          s_lshl_b32 {sT[1]}, {sIDX}, 2
          s_add_u32 {sT[1]}, {sT[1]}, {sW}
          s_mul_i32 {sT[1]}, {sT[1]}, 6400
          s_mul_i32 {sT[2]}, {sCH}, 640
          s_add_u32 {sT[1]}, {sT[1]}, {sT[2]}
          s_mov_b32 exec_hi, 0xff""")
    k.vm(f"buffer_load_dword {vJ[0]}, {vTX}, {dX}, {sT[0]} offen")
    e(f"s_mov_b32 exec_hi, 0\ns_mov_b32 exec_lo, 0x1ffffff")
    k.vm(f"buffer_load_dword {vJ[1]}, {vTW}, {dW1}, {sT[1]} offen")
    e("s_mov_b64 exec, -1")
    k.free(vTX, vTW)
    if cfg.early: stamp("i_touch")
    ST1 = 153600
    lds.alloc(92160, "x", at=0); lds.alloc(10240, "pk1", at=ST1)
    pack_params(1)
    tokPK1src = pack_dma(40, ST1)
    if cfg.early: stamp("i_pk1")
    e(f"""s_lshl_b32 {sT[0]}, {sW}, 4
          s_add_u32 {sT[0]}, {sT[0]}, {sRB}
          s_mul_i32 {sT[1]}, {sT[0]}, 1280
          s_cmp_lt_i32 {sT[0]}, 0
          s_cselect_b32 {sT[2]}, {OOB}, {sT[1]}
          s_add_u32 {sT[1]}, {sT[1]}, 10240
          s_mul_i32 {sT[3]}, {sW}, 20480
          s_mov_b32 m0, {sT[3]}""")
    for rg in range(2):
        so = sT[2] if rg == 0 else sT[1]
        for cb in range(10):
            k.vm(f"buffer_load_dwordx4 {vXD}, {dX}, {so} offen lds")
            e(f"s_add_u32 m0, m0, 1024")
            if cb < 9: e(f"s_add_u32 {so}, {so}, 128")
    e(f"""s_add_u32 {sT[0]}, {sRB}, 64
          s_mul_i32 {sT[0]}, {sT[0]}, 1280
          s_lshl_b32 {sT[1]}, {sW}, 7
          s_add_u32 {sT[0]}, {sT[0]}, {sT[1]}
          s_lshl_b32 {sT[1]}, {sW}, 10
          s_add_u32 {sT[1]}, {sT[1]}, 81920""")
    for i in range(3):
        if i == 2: sel(f"s_cmp_ge_u32 {sW}, 2", [(sT[1], LDS_SIZE), (sT[0], OOB)])
        e(f"s_mov_b32 m0, {sT[1]}")
        tokX = k.vm(f"buffer_load_dwordx4 {vXD}, {dX}, {sT[0]} offen lds")
        e(f"s_add_u32 {sT[0]}, {sT[0]}, 512\ns_add_u32 {sT[1]}, {sT[1]}, 4096")
    k.free(vXD)
    if cfg.early: stamp("i_x")
    vW1D = k.V(5, "vW1D")
    assert all((q*6554) >> 16 == q//10 for q in range(320))
    for i in range(5):
        e(f"""v_add_u32 {t[0]}, {64*i}, {vL}
              v_mul_u32_u24 {t[1]}, 6554, {t[0]}
              v_lshrrev_b32 {t[1]}, 16, {t[1]}
              v_mul_u32_u24 {t[2]}, 10, {t[1]}
              v_sub_u32 {t[0]}, {t[0]}, {t[2]}
              v_and_b32 {t[2]}, 0x13, {t[1]}
              v_and_b32 {t[3]}, 4, {t[1]}
              v_lshl_or_b32 {t[2]}, {t[3]}, 1, {t[2]}
              v_bfe_u32 {t[3]}, {t[1]}, 3, 1
              v_lshl_or_b32 {t[2]}, {t[3]}, 2, {t[2]}
              v_mul_u32_u24 {t[2]}, 1280, {t[2]}
              v_lshl_add_u32 {vW1D[i]}, {t[0]}, 4, {t[2]}""")
    sW1B = k.S(1, "sW1B")
    e(f"""s_mul_i32 {sT[0]}, {sHK}, 10
          s_add_u32 {sT[0]}, {sT[0]}, {sM}
          s_mul_i32 {sW1B}, {sT[0]}, 40960
          s_mul_i32 {sT[1]}, {sJ}, 160
          s_add_u32 {sW1B}, {sW1B}, {sT[1]}
          s_mul_i32 {sT[1]}, {sJ}, 20
          s_add_u32 {sT[2]}, {sT[1]}, {sT[0]}
          s_mul_i32 {sJW}, {sT[2]}, 5120
          s_sub_u32 {sT[2]}, {sT[2]}, {sM}
          s_mul_i32 {sJWkv}, {sT[2]}, 5120
          s_mul_i32 {sT[3]}, {sM}, {SZ80}
          s_add_u32 {sJWkv}, {sJWkv}, {sT[3]}
          s_lshl_b32 {sT[1]}, {sT[1]}, 1
          s_add_u32 {sT[1]}, {sT[1]}, {sT[0]}
          s_mul_i32 {sJW3}, {sT[1]}, 6144
          s_mul_i32 {sT[1]}, {sJ}, 48
          s_mul_i32 {sT[2]}, {sHK}, 12
          s_add_u32 {sT[1]}, {sT[1]}, {sT[2]}
          s_add_u32 {sT[1]}, {sT[1]}, {sM}
          s_mul_i32 {sJW4}, {sT[1]}, 5120""")

    class Chunk:
        def __init__(s, name, nf, base, off, raw=False, gate=None):
            s.name = name; s.nf = nf; s.base = base; s.off = off; s.raw = raw; s.gate = gate
            s.addr = None; s.n = 0; s.tok = None
        def size(s): return 4*s.nf*1024
    def mk80(name, pw, gate): return [Chunk(f"{name}{c}", 5, sJW, pw + c*10240, gate=gate) for c in range(5)]
    CW1 = [Chunk(f"w1_{c}", 5, sW1B, c*81920, raw=True) for c in range(5)]
    CKV = [Chunk(f"kv{c}", 5, sJWkv, PW_K + c*5120, gate="pack1") for c in range(10)]
    CW2 = mk80("w2_", PW_2, "pack1"); CQ = mk80("q", PW_Q, "pack2"); CO = mk80("wo", PW_O, "pack2")
    CW3 = [[Chunk(f"w3_{h}{c}", 6, sJW3, PW_3 + (20*h + 2*c)*6144, gate="pack2") for c in range(5)] for h in range(2)]
    CW4 = [[Chunk(f"w4_{h}{c}", 5, sJW4, PW_4 + (24*h + 2*c)*5120, gate="pack2") for c in range(6)] for h in range(2)]
    stream = CW1 + CKV + CW2 + CQ + CW3[0] + CW3[1] + CW4[0] + CO + CW4[1]
    gates = set(); pump_state = dict(i=0, last=0, pace=72, on=True)
    RING_TOP = [L_SCR]
    def pump_one():
        i = pump_state["i"]
        if i >= len(stream): return False
        c = stream[i]
        if c.gate and c.gate not in gates: return False
        if c.addr is None:
            a = lds.alloc(c.size(), c.name)
            if a is None: return False
            if a + c.size() > RING_TOP[0] and not c.raw:
                lds.free(c.name); return False
            c.addr = a
        n = c.n
        sWk = sW5K if c.nf == 5 else sW6K
        with nohook():
            if c.raw:
                if n == 0: e(f"s_add_u32 {sDT}, {c.base}, {c.off}")
                e(f"s_add_u32 m0, {sWk}, {c.addr + 1024*n}")
                c.tok = k.vm(f"buffer_load_dwordx4 {vW1D[n]}, {dW1}, {sDT} offen lds")
            else:
                if n % 4 == 0:
                    e(f"s_add_u32 {sDT}, {c.base}, {c.off + 1024*n}\ns_add_u32 m0, {sWk}, {c.addr + 1024*n}")
                c.tok = k.vm(f"buffer_load_dwordx4 {vL16}, {dWS}, {sDT} offen offset:{1024*(n % 4)} sc1 lds")
        c.n += 1
        if c.n == c.nf: pump_state["i"] += 1
        pump_state["last"] = k.cyc
        return True
    def hook(kk):
        if pump_state["on"] and kk.cyc - pump_state["last"] >= pump_state["pace"]: pump_one()
    def pump_until(c):
        while c.n < c.nf:
            assert pump_one(), f"cannot issue {c.name}: lds={lds.used} gates={gates}"
    def mid_chunk():
        pass

    for c in range(3):
        CW1[c].addr = lds.alloc(20480, CW1[c].name, at=92160 + 20480*c)
        pump_until(CW1[c])
        if cfg.early: stamp(f"i_w1{c}")
    e(f"""s_getpc_b64 {sC}
          s_lshl_b32 {sT[0]}, {sIDX}, 2
          s_add_u32 {sT[0]}, {sT[0]}, {sW}
          s_lshl_b32 {sT[0]}, {sT[0]}, 10
          v_lshl_add_u32 {t[0]}, {vL}, 7, {sT[0]}
          v_cmp_gt_u32 vcc, CODE_BYTES, {t[0]}
          s_and_b64 exec, vcc, 0xff
          s_cbranch_execz Lnopf""")
    e(f"global_load_dword {vJ[0]}, {t[0]}, {sC}")
    e("Lnopf:\ns_mov_b64 exec, -1")

    pa1 = pack_addr(40, ST1)
    vONE = k.V(4, "ones");
    for i in range(4): e(f"v_mov_b32 {vONE[i]}, 0x3f803f80")
    vF8 = k.V(1, "vF8"); vF32 = k.V(1, "vF32"); vTAG = k.V(1, "vTAG"); vZ = k.V(1, "vZ")
    e(f"v_and_b32 {vF8}, 7, {vL}\nv_lshlrev_b32 {vF8}, 4, {vF8}\nv_and_b32 {vF32}, 31, {vL}\nv_lshlrev_b32 {vF32}, 7, {vF32}\nv_mov_b32 {vZ}, 0")
    vWr5 = k.V(1, "vWr5"); vWr6 = k.V(1, "vWr6")
    e(f"s_mul_i32 {sT[0]}, {sHK}, 10240\nv_add_u32 {vWr5}, {sT[0]}, {vL16}\ns_mul_i32 {sT[0]}, {sHK}, 12288\nv_add_u32 {vWr6}, {sT[0]}, {vL16}")
    e(f"""s_lshl_b32 {sT[0]}, {sR}, 2
          s_add_u32 {sXB0}, {sT[0]}, {sRF0}
          s_add_u32 {sXB1}, {sT[0]}, {sRF1}
          s_lshl_b32 {sFL}, {sR}, 7""")
    vXR = k.V(8, "vXR"); vRES = k.V(3, "vRESa")
    for ver in range(2):
        for slot in range(2):
            rf = sRF0 if slot == 0 else sRF1
            e(f"s_lshl_b32 {sT[0]}, {rf}, 4\ns_add_u32 {sT[0]}, {sT[0]}, {sOFF0}")
            if ver == 0: e(f"s_sub_u32 {sT[0]}, {sT[0]}, {sSH}")
            a0 = vXR[4*ver + 2*slot]; a1 = vXR[4*ver + 2*slot + 1]
            e(f"""v_add_u32 {t[0]}, {sT[0]}, {vS}
                  v_lshrrev_b32 {t[1]}, 3, {t[0]}
                  v_and_b32 {t[0]}, 7, {t[0]}
                  v_mul_u32_u24 {t[1]}, 10240, {t[1]}
                  v_lshl_add_u32 {t[1]}, {t[0]}, 7, {t[1]}
                  v_xor_b32 {t[2]}, {vG}, {t[0]}
                  v_lshl_add_u32 {a0}, {t[2]}, 4, {t[1]}
                  v_add_u32 {a0}, {sT[1] if False else sW5K if False else 0}, {a0}""".replace(f"v_add_u32 {a0}, 0, {a0}", f"s_mul_i32 {sT[1]}, {sHK}, 5120\nv_add_u32 {a0}, {sT[1]}, {a0}"))
            e(f"v_xor_b32 {a1}, 64, {a0}")
            if ver == 1 and slot == 0:
                e(f"s_mul_i32 {sT[1]}, {sJ}, 10")
                for n in range(3):
                    if n < 2: e(f"v_add_u32 {t[2]}, {sT[1]}, {vG}" + (f"\nv_add_u32 {t[2]}, 4, {t[2]}" if n else ""))
                    else: e(f"v_lshrrev_b32 {t[2]}, 1, {vG}\nv_add3_u32 {t[2]}, {t[2]}, {sT[1]}, 8")
                    e(f"""v_lshrrev_b32 {t[3]}, 3, {t[2]}
                          v_and_b32 {t[2]}, 7, {t[2]}
                          v_xor_b32 {t[2]}, {t[2]}, {t[0]}
                          v_lshl_add_u32 {t[3]}, {t[3]}, 10, {t[1]}
                          v_lshl_add_u32 {vRES[n]}, {t[2]}, 4, {t[3]}""")
                    if n == 2: e(f"v_and_b32 {t[2]}, 1, {vG}\nv_lshl_add_u32 {vRES[n]}, {t[2]}, 3, {vRES[n]}")
    k.free(sSH, sOFF0, sRB)
    vB = k.V(3, "vB")
    e(f"""v_lshrrev_b32 {t[0]}, 5, {vL}
          v_bfe_u32 {t[1]}, {vL}, 4, 1
          v_bfe_u32 {t[2]}, {vL}, 2, 2
          v_lshl_add_u32 {t[1]}, {t[1]}, 2, {t[2]}
          v_lshl_add_u32 {t[0]}, {t[0]}, 4, {t[1]}
          v_mul_u32_u24 {t[0]}, 160, {t[0]}
          s_mul_i32 {sT[0]}, {sHK}, 10240
          v_add_u32 {t[0]}, {sT[0]}, {t[0]}
          v_and_b32 {t[1]}, 3, {vL}
          v_lshrrev_b32 {t[2]}, 1, {t[1]}
          v_lshl_add_u32 {t[3]}, {t[1]}, 4, {t[0]}
          v_lshl_add_u32 {vB[0]}, {t[2]}, 3, {t[3]}
          v_xor_b32 {t[2]}, 1, {t[2]}
          v_lshl_add_u32 {vB[1]}, {t[2]}, 3, {t[3]}
          v_lshl_add_u32 {vB[2]}, {t[1]}, 3, {t[0]}""")
    e(f"s_mov_b32 {sL2E[0]}, {hex(f2u(math.log2(math.e)))}\ns_mov_b32 {sL2E[1]}, {hex(f2u(math.log2(math.e)))}")
    e("s_waitcnt lgkmcnt(0)")
    e(f"s_add_u32 {sTAG}, {sTAG}, 1\nv_mov_b32 {vTAG}, {sTAG}")

    def publish(off_text_setup, soff):
        with nohook():
            e(off_text_setup)
            e(f"s_add_u32 {soff}, {soff}, {sW0}\ns_mov_b64 exec, 1")
            tok = k.vm(f"buffer_store_dword {vTAG}, {vZ}, {dWS}, {soff} offen sc1")
            e("s_mov_b64 exec, -1")
        return tok
    def pub_cluster(F): return publish(f"s_lshl_b32 {sT[7]}, {sJ}, 4\ns_add_u32 {sT[7]}, {sT[7]}, {sFL}\ns_add_u32 {sT[7]}, {sT[7]}, {F}", sT[7])
    def pub_pack(F): return publish(f"s_lshl_b32 {sT[7]}, {sCH}, 7\ns_add_u32 {sT[7]}, {sT[7]}, {sPI}\ns_lshl_b32 {sT[7]}, {sT[7]}, 4\ns_add_u32 {sT[7]}, {sT[7]}, {F}", sT[7])
    def pub_col(F): return publish(f"s_lshl_b32 {sT[7]}, {sJ}, 5\ns_add_u32 {sT[7]}, {sT[7]}, {sR}\ns_lshl_b32 {sT[7]}, {sT[7]}, 7\ns_add_u32 {sT[7]}, {sT[7]}, {F}", sT[7])
    class Poll: pass
    def poll_issue(kind, F):
        p = Poll(); p.so = k.S(1, "pollso"); p.n = 2 if kind == "pack" else 1
        p.d = k.V(p.n, "polld"); p.va = {"pack": vL16, "cluster": vF8, "col": vF32}[kind]
        with nohook():
            if kind == "pack": e(f"s_lshl_b32 {p.so}, {sCH}, 11\ns_add_u32 {p.so}, {p.so}, {F}")
            elif kind == "cluster": e(f"s_add_u32 {p.so}, {sFL}, {F}")
            else: e(f"s_lshl_b32 {p.so}, {sJ}, 12\ns_add_u32 {p.so}, {p.so}, {F}")
            p.loads = [f"buffer_load_dword {p.d[i]}, {p.va}, {dWS}, {p.so} offen offset:{1024*i} sc1" for i in range(p.n)]
            for l in p.loads: p.tok = k.vm(l)
        return p
    def poll_check(p):
        slow, back, loop = k.lab("Lslow"), k.lab("Lback"), k.lab("Lloop")
        def cmp_text():
            s = f"v_cmp_ne_u32 vcc, {sTAG}, {p.d[0]}\n"
            if p.n == 2: s += f"v_cmp_ne_u32 {sC}, {sTAG}, {p.d[1]}\ns_nop 1\ns_or_b64 vcc, vcc, {sC}\n"
            return s
        with nohook():
            k.wait(vm=p.tok)
            e(cmp_text() + f"s_nop 1\ns_cbranch_vccnz {slow}\n{back}:")
        tail.append(f"{slow}:\ns_mov_b32 {sT[7]}, {cfg.spin}\n{loop}:\ns_sleep 1\n" + "\n".join(p.loads) + f"\ns_waitcnt vmcnt(0)\n" + cmp_text() +
                    f"s_nop 1\ns_cbranch_vccz {back}\ns_sub_u32 {sT[7]}, {sT[7]}, 1\ns_cmp_lg_u32 {sT[7]}, 0\ns_cbranch_scc1 {loop}\ns_branch {back}")
        k.free(p.so, p.d)
    def touch(base_s, off, nlines_per_wave):
        tv = k.V(1, "touch")
        with nohook():
            e(f"""s_lshr_b32 {sT[6]}, {sIDX}, 2
                  s_lshl_b32 {sT[6]}, {sT[6]}, 2
                  s_add_u32 {sT[6]}, {sT[6]}, {sW}
                  s_mul_i32 {sT[6]}, {sT[6]}, {nlines_per_wave*128}
                  s_add_u32 {sT[6]}, {sT[6]}, {base_s}
                  s_add_u32 {sT[6]}, {sT[6]}, {off}
                  v_lshlrev_b32 {tv}, 7, {vL}""")
            m = (1 << nlines_per_wave) - 1
            e(f"s_mov_b32 exec_lo, {hex(m & 0xffffffff)}\ns_mov_b32 exec_hi, {hex(m >> 32)}")
            k.vm(f"buffer_load_dword {vJ[1]}, {tv}, {dWS}, {sT[6]} offen")
            e("s_mov_b64 exec, -1")
        k.free(tv)
    sJ100 = k.S(1, "sJ100"); sJ240 = k.S(1, "sJ240")
    e(f"s_mul_i32 {sJ100}, {sJ}, 102400\ns_mul_i32 {sJ240}, {sJ}, 245760")

    def finish(early=False):
        pass

    if cfg.early:
        stamp("consts"); k.wait(vm=2); stamp("touched"); k.wait(vm=tokPK1src); stamp("pk1w")
    k.wait(vm=tokPK1src); barrier()
    stamp("pk1src")
    tokPK1 = pack_do(pa1)
    XA = k.A(80, "xA"); XB = k.A(80, "xB")
    def xf(X, slot, tt): return X[40*slot + 4*tt: 40*slot + 4*tt + 4]
    k.wait(vm=tokX); barrier()
    stamp("xland")
    lds.free("pk1")
    lds.alloc(4096, "misc", at=L_ZERO)
    toks = {}
    for tt in range(10):
        for slot in range(2):
            toks[(tt, slot)] = k.ds(f"ds_read_b128 {xf(XB, slot, tt)}, {vXR[2*slot + (tt & 1)]} offset:{(tt >> 1)*1024}")
            if k.nds - k.ds_done >= 14: k.wait(ds=k.nds - 10)
    def stats_mfma(X, accS, accQ, waitf):
        for tt in range(10):
            for slot in range(2):
                waitf(tt, slot)
                c0 = "0" if tt == 0 else accS[4*slot:4*slot+4]; c1 = "0" if tt == 0 else accQ[4*slot:4*slot+4]
                e(f"v_mfma_f32_16x16x32_bf16 {accS[4*slot:4*slot+4]}, {vONE}, {xf(X, slot, tt)}, {c0}")
                e(f"v_mfma_f32_16x16x32_bf16 {accQ[4*slot:4*slot+4]}, {xf(X, slot, tt)}, {xf(X, slot, tt)}, {c1}")
    accS = k.V(8, "accS"); accQ = k.V(8, "accQ")
    RES = k.V(10, "RES")
    pend = [(tt, slot) for tt in range(10) for slot in range(2)]
    def wf(tt, slot):
        k.wait(ds=toks[(tt, slot)])
        if pend and k.nds - k.ds_done < 12:
            t2, s2 = pend.pop(0)
            k.ds(f"ds_read_b128 {xf(XA, s2, t2)}, {vXR[4 + 2*s2 + (t2 & 1)]} offset:{(t2 >> 1)*1024}")
    stats_mfma(XB, accS, accQ, wf)
    while pend:
        t2, s2 = pend.pop(0)
        if k.nds - k.ds_done >= 14: k.wait(ds=k.nds - 10)
        k.ds(f"ds_read_b128 {xf(XA, s2, t2)}, {vXR[4 + 2*s2 + (t2 & 1)]} offset:{(t2 >> 1)*1024}")
    k.wait(ds=k.nds - 10)
    k.ds(f"ds_read_b128 {RES[0:4]}, {vRES[0]}"); k.ds(f"ds_read_b128 {RES[4:8]}, {vRES[1]}"); k.ds(f"ds_read_b64 {RES[8:10]}, {vRES[2]}")
    k.free(vXR, vRES)
    def setexec(lo, hi): e(f"s_mov_b32 exec_lo, {hex(lo)}\ns_mov_b32 exec_hi, {hex(hi)}")
    def setvcc(lo, hi): e(f"s_mov_b32 vcc_lo, {hex(lo)}\ns_mov_b32 vcc_hi, {hex(hi)}")
    vST = k.V(2, "vST")
    for slot in range(2):
        e(f"s_lshl_b32 {sT[0]}, {sRF0 if slot == 0 else sRF1}, 7\ns_add_u32 {sT[0]}, {sT[0]}, {L_STAT}\nv_lshl_add_u32 {vST[slot]}, {vS}, 3, {sT[0]}")
    def stats_write(accS, accQ):
        tv = k.V(4, "stw")
        for r in range(1, 4):
            setvcc(0x11111111 << r, 0x11111111 << r)
            for slot in range(2):
                q = accQ[4*slot:4*slot+4]
                e(f"v_cndmask_b32 {tv[2*slot+1]}, {q[0] if r == 1 else tv[2*slot+1]}, {q[r]}, vcc")
        for slot in range(2): e(f"v_mov_b32 {tv[2*slot]}, {accS[4*slot]}")
        ta = k.V(2, "sta")
        e(f"s_lshl_b32 {sT[0]}, {sHK}, 9\nv_add_u32 {ta[0]}, {sT[0]}, {vST[0]}\nv_add_u32 {ta[1]}, {sT[0]}, {vST[1]}")
        with nohook():
            setexec(0x00f0000f, 0xf0000f00)
            k.ds(f"ds_write_b64 {ta[0]}, {tv[0:2]}"); k.ds(f"ds_write_b64 {ta[1]}, {tv[2:4]}")
            e("s_mov_b64 exec, -1")
        k.free(tv, ta)
    def stats_read(slots):
        out = []
        tv = k.V(4, "str")
        for slot in slots:
            k.ds(f"ds_read_b64 {tv[0:2]}, {vST[slot]}"); tk = k.ds(f"ds_read_b64 {tv[2:4]}, {vST[slot]} offset:512")
            k.wait(ds=tk)
            nm = k.V(2, "negmean"); rs = k.V(2, "rstd")
            e(f"""v_pk_add_f32 {tv[0:2]}, {tv[0:2]}, {tv[2:4]}
                  v_mul_f32 {nm[0]}, {hex(f2u(-1.0/640))}, {tv[0]}
                  v_mul_f32 {tv[1]}, {hex(f2u(1.0/640))}, {tv[1]}
                  v_fma_f32 {tv[1]}, -{nm[0]}, {nm[0]}, {tv[1]}
                  v_max_f32 {tv[1]}, 0, {tv[1]}
                  v_add_f32 {tv[1]}, {hex(f2u(1e-5))}, {tv[1]}
                  v_rsq_f32 {rs[0]}, {tv[1]}""")
            out.append((nm, rs))
        k.free(tv)
        return out
    stats_write(accS, accQ)
    e(f"v_mov_b32 {t[0]}, 0\nv_mov_b32 {t[1]}, 0\nv_mov_b32 {t[2]}, 0\nv_mov_b32 {t[3]}, 0\nv_add_u32 {t[4]}, {L_ZERO}, {vL16}")
    k.ds(f"ds_write_b128 {t[4]}, {t[0:4]}")
    k.free(accS, accQ)
    k.wait(vm=tokPK1, ds=k.nds); barrier()
    lds.free("x")
    pub_pack(F_PACK1)
    stamp("stats")
    pump_until(CW1[3]); pump_until(CW1[4])
    ST2A = lds.alloc(12288, "pk2a"); ST2B = lds.alloc(12288, "pk2b"); LPHI = lds.alloc(4096, "phi")
    pack_params(2); pack_dma(48, ST2A); pa2 = pack_addr(48, ST2A)
    pack_params(3); tokPK2src = pack_dma(48, ST2B); pa3 = pack_addr(48, ST2B)
    srd(dPK, pPHI, 25600)
    e(f"s_mul_i32 {sT[0]}, {sJ}, 3200\ns_lshl_b32 {sT[1]}, {sW}, 10\ns_add_u32 {sT[0]}, {sT[0]}, {sT[1]}\ns_add_u32 m0, {sT[1]}, {LPHI}")
    tokPHI = k.vm(f"buffer_load_dwordx4 {vL16}, {dPK}, {sT[0]} offen lds")
    k.free(P[2:8], P[12:16], PWS, P2[0:2], P2[6:8], sPitch, sSrc, sDst, sDstr, sCm, sCm2, sIst, sSlB, sLast, sGv)
    st1 = stats_read([0, 1])
    k.hook = hook

    WB = k.V(48, "WB")
    vWA = k.V(3, "vWA")
    def gemm(chunks, units, acc, first_zero=True, raw=False, extra=None, events=None, xwait=None):
        events = events or {}
        nf = chunks[0].nf; nacc = acc.n // 8
        seen = set()
        def enter(c):
            ch = chunks[c]
            pump_until(ch)
            fine = any(ch.name.startswith(p) for p in cfg.fine)
            if fine: stamp("a" + ch.name)
            for fn in events.get(("pre", c), []): fn()
            k.wait(vm=ch.tok, ds=k.nds); barrier()
            if fine: stamp("b" + ch.name)
            if c > 0: lds.free(chunks[c-1].name)
            for fn in events.get(("post", c), []): fn()
            if raw:
                for i in range(3): e(f"v_add_u32 {vWA[i]}, {ch.addr}, {vB[i]}")
            else:
                e(f"v_add_u32 {vWA[0]}, {ch.addr}, {vWr5 if nf == 5 else vWr6}")
        def reads(u):
            b = WB[24*(u & 1): 24*(u & 1) + 4*nf]; o = (u & 1)*nf*1024; L = []
            for f in range(nf):
                if raw:
                    a = vWA[2] if f == 4 else vWA[f & 1]; oo = o + (128 if f == 4 else 64*(f >> 1))
                    L.append([f"ds_read_b64_tr_b16 {b[4*f:4*f+2]}, {a} offset:{oo}", f"ds_read_b64_tr_b16 {b[4*f+2:4*f+4]}, {a} offset:{oo+1280}"])
                else:
                    L.append([f"ds_read_b128 {b[4*f:4*f+4]}, {vWA[0]} offset:{o + 1024*f}"])
            return L
        enter(0)
        rt = {}
        for f, l in enumerate(reads(0)):
            for x in l: rt[(0, f)] = k.ds(x)
        for u in range(len(units)):
            nxt = None
            if u + 1 < len(units):
                if (u + 1) % 2 == 0: enter((u + 1)//2)
                nxt = reads(u + 1)
            x0, x1, ab = units[u]
            if xwait: xwait(u)
            b = WB[24*(u & 1): 24*(u & 1) + 4*nf]
            for f in range(nf):
                k.wait(ds=rt[(u, f)])
                if nxt:
                    for x in nxt[f]: rt[(u + 1, f)] = k.ds(x)
                for slot, x in ((0, x0), (1, x1)):
                    q = (slot*nacc + ab + f)*4; d = acc[q:q+4]
                    c = "0" if (first_zero and (slot, ab + f) not in seen) else d
                    seen.add((slot, ab + f))
                    e(f"v_mfma_f32_16x16x32_bf16 {d}, {b[4*f:4*f+4]}, {x}, {c}")
                if extra: extra(u, f, b[4*f:4*f+4])
        return chunks[-1].name
    def exchange(send, keep, last_chunk, pre=None, post=None, area=None):
        n = send.n // 4; area = L_SCR if area is None else area
        ta = k.V(2, "xa")
        e(f"s_mul_i32 {sT[0]}, {sW}, {n*1024}\ns_add_u32 {sT[0]}, {sT[0]}, {area}\nv_add_u32 {ta[0]}, {sT[0]}, {vL16}")
        e(f"s_xor_b32 {sT[0]}, {sW}, 2\ns_mul_i32 {sT[0]}, {sT[0]}, {n*1024}\ns_add_u32 {sT[0]}, {sT[0]}, {area}\nv_add_u32 {ta[1]}, {sT[0]}, {vL16}")
        for i in range(n): k.ds(f"ds_write_b128 {ta[0]}, {send[4*i:4*i+4]} offset:{1024*i}")
        if pre: pre()
        k.wait(ds=k.nds); barrier()
        if last_chunk: lds.free(last_chunk)
        if post: post()
        tk = [k.ds(f"ds_read_b128 {send[4*i:4*i+4]}, {ta[1]} offset:{1024*i}") for i in range(n)]
        for i in range(n):
            k.wait(ds=tk[i])
            for h in range(2): e(f"v_pk_add_f32 {keep[4*i+2*h:4*i+2*h+2]}, {keep[4*i+2*h:4*i+2*h+2]}, {send[4*i+2*h:4*i+2*h+2]}")
        k.free(ta)
    GA = -2.0*math.sqrt(2.0/math.pi)*math.log2(math.e)
    vGB = k.V(2, "vGB"); sGA = k.S(2, "sGA")
    e(f"v_mov_b32 {vGB[0]}, {hex(f2u(GA))}\nv_mov_b32 {vGB[1]}, {hex(f2u(GA))}\ns_mov_b32 {sGA[0]}, {hex(f2u(GA*0.044715))}\ns_mov_b32 {sGA[1]}, {hex(f2u(GA*0.044715))}")
    def gelu(y, rs, out):
        npair = y.n // 2; B = 5 if npair % 5 == 0 else 6
        z = k.V(2*B, "gz")
        for b0 in range(0, npair, B):
            ps = list(range(b0, b0 + B))
            Y = lambda p: y[2*p:2*p+2]; Z = lambda p: z[2*(p-b0):2*(p-b0)+2]
            for p in ps: e(f"v_pk_mul_f32 {Y(p)}, {Y(p)}, {rs} op_sel_hi:[1,0]")
            for p in ps: e(f"v_pk_mul_f32 {Z(p)}, {Y(p)}, {Y(p)}")
            for p in ps: e(f"v_pk_fma_f32 {Z(p)}, {Z(p)}, {sGA}, {vGB}")
            for p in ps: e(f"v_pk_mul_f32 {Z(p)}, {Z(p)}, {Y(p)}")
            for p in ps: e(f"v_exp_f32 {Z(p)[0]}, {Z(p)[0]}\nv_exp_f32 {Z(p)[1]}, {Z(p)[1]}")
            for p in ps: e(f"v_pk_add_f32 {Z(p)}, {Z(p)}, 1.0 op_sel_hi:[1,0]")
            for p in ps: e(f"v_rcp_f32 {Z(p)[0]}, {Z(p)[0]}\nv_rcp_f32 {Z(p)[1]}, {Z(p)[1]}")
            for p in ps: e(f"v_pk_mul_f32 {Y(p)}, {Y(p)}, {Z(p)}")
            for p in ps: e(f"v_cvt_pk_bf16_f32 {out[p]}, {Y(p)[0]}, {Y(p)[1]}")
        k.free(z)
    vH3 = k.V(1, "vH3")
    e(f"""v_lshrrev_b32 {t[0]}, 1, {vG}
          v_lshlrev_b32 {t[0]}, 8, {t[0]}
          v_lshl_add_u32 {t[0]}, {vS}, 4, {t[0]}
          v_and_b32 {t[1]}, 1, {vG}
          v_lshl_add_u32 {vH3}, {t[1]}, 30, {t[0]}""")
    def store80(Pk, base):
        e(f"v_mov_b32 {Pk[10]}, {Pk[8]}\nv_mov_b32 {Pk[11]}, {Pk[9]}")
        with nohook():
            e(f"s_mul_i32 {sT[0]}, {sXB0}, 20480\ns_mul_i32 {sT[1]}, {sJ}, 2560\ns_add_u32 {sT[0]}, {sT[0]}, {sT[1]}\ns_add_u32 {sT[0]}, {sT[0]}, {base}")
            k.vm(f"buffer_store_dwordx4 {Pk[0:4]}, {vL16}, {dWS}, {sT[0]} offen sc1")
            k.vm(f"buffer_store_dwordx4 {Pk[4:8]}, {vL16}, {dWS}, {sT[0]} offen offset:1024 sc1")
            e(f"v_permlane16_swap_b32 {Pk[8]}, {Pk[10]}\nv_permlane16_swap_b32 {Pk[9]}, {Pk[11]}")
            tok = k.vm(f"buffer_store_dwordx4 {Pk[8:12]}, {vH3}, {dWS}, {sT[0]} offen offset:2048 sc1")
            e("s_nop 1")
        return tok
    def load_x(X, base, nsteps, gran, step0):
        toks = {}
        with nohook():
            for slot, xb in ((0, sXB0), (1, sXB1)):
                e(f"s_mul_i32 {sT[slot]}, {xb}, {gran*256}\ns_mul_i32 {sT[2]}, {sHK}, {nsteps*1024}\ns_add_u32 {sT[slot]}, {sT[slot]}, {sT[2]}\ns_add_u32 {sT[slot]}, {sT[slot]}, {base + step0*1024}")
            for tt in range(nsteps):
                for slot in range(2):
                    d = X[4*nsteps*slot + 4*tt: 4*nsteps*slot + 4*tt + 4]
                    toks[(tt, slot)] = k.vm(f"buffer_load_dwordx4 {d}, {vL16}, {dWS}, {sT[slot]} offen offset:{1024*(tt % 4)} sc1")
                if tt % 4 == 3: e(f"s_add_u32 {sT[0]}, {sT[0]}, 4096\ns_add_u32 {sT[1]}, {sT[1]}, 4096")
        return toks
    def units80(X, ab=0, n=10): return [(X[4*tt:4*tt+4], X[4*n + 4*tt: 4*n + 4*tt + 4], ab) for tt in range(n)]

    ACC = k.V(80, "ACC"); CS = k.V(20, "CS")
    st = {}
    def cs_extra(u, f, w): e(f"v_mfma_f32_16x16x32_bf16 {CS[4*f:4*f+4]}, {w}, {vONE}, {'0' if u == 0 else CS[4*f:4*f+4]}")
    def ev_pack2():
        st["pk2a"] = pack_do(pa2); st["pk2"] = pack_do(pa3)
    def ev_pack2_wait(): k.wait(vm=tokPHI)
    def ev_poll1(): st["p1"] = poll_issue("pack", F_PACK1)
    def ev_chk1():
        poll_check(st["p1"]); touch(sJ100, PW_K, 25); touch(sJ100, PW_V, 25); touch(sJ100, PW_2, 25); gates.add("pack1")
    def ev_free2(): lds.free("pk2a"); lds.free("pk2b")
    last = gemm(CW1, units80(XB), ACC[0:40], raw=True, extra=cs_extra,
                events={("pre", 3): [ev_pack2_wait], ("post", 3): [ev_pack2, ev_poll1], ("post", 4): [ev_free2, ev_chk1]})
    stamp("w1")
    k.free(vW1D, vB, sW1B, dW1)
    lds.alloc(SCR_SIZE, "scr", at=L_SCR)
    for slot in range(2):
        for i in range(10):
            d = ACC[20*slot + 2*i: 20*slot + 2*i + 2]
            e(f"v_pk_fma_f32 {d}, {CS[2*i:2*i+2]}, {st1[slot][0]}, {d} op_sel_hi:[1,0,1]")
    exchange(ACC[20:40], ACC[0:20], last)
    PK = k.V(12, "PK")
    gelu(ACC[0:20], st1[0][1], PK)
    setvcc(0, 0xffffffff)
    for a in range(2):
        for h in range(2):
            x, y = PK[4*a + h], PK[4*a + 2 + h]
            e(f"v_cndmask_b32 {t[0]}, {x}, {y}, vcc\nv_cndmask_b32 {y}, {y}, {x}, vcc\nv_mov_b32 {x}, {t[0]}")
    tokHS = store80(PK, HS)
    stamp("hs")
    k.free(CS, *st1[0], *st1[1])
    PH = k.A(60, "PH")
    e(f"""v_and_b32 {t[0]}, 3, {vL}
          v_bfe_u32 {t[1]}, {vL}, 2, 2
          v_mul_u32_u24 {t[1]}, 40, {t[1]}
          v_mul_u32_u24 {t[2]}, 800, {vG}
          v_add3_u32 {t[1]}, {t[1]}, {t[2]}, {LPHI}
          v_mov_b32 {t[2]}, {L_ZERO}
          v_cmp_eq_u32 vcc, {t[0]}, {vG}
          v_cndmask_b32 {t[0]}, {t[2]}, {t[1]}, vcc""".replace(f"v_add3_u32 {t[1]}, {t[1]}, {t[2]}, {LPHI}", f"v_add_u32 {t[1]}, {t[1]}, {t[2]}\nv_add_u32 {t[1]}, {LPHI}, {t[1]}"))
    for tau in range(5):
        for u in range(3):
            d = PH[(tau*3 + u)*4:(tau*3 + u)*4 + 4]
            if k.nds - k.ds_done >= 13: k.wait(ds=k.nds - 8)
            k.ds(f"ds_read_b64_tr_b16 {d[0:2]}, {t[0]} offset:{320*u + 8*tau}")
            if u < 2: k.ds(f"ds_read_b64_tr_b16 {d[2:4]}, {t[0]} offset:{320*u + 160 + 8*tau}")
            else: e(f"v_accvgpr_write_b32 {d[2]}, 0\nv_accvgpr_write_b32 {d[3]}, 0")
    def ev_pubH_pre(): k.wait(vm=max(tokHS, st["pk2"]))
    def ev_pubH(): pub_cluster(F_H); pub_pack(F_PACK2)
    def ev_freephi(): lds.free("phi")
    def ev_pollH(): st["pH"] = poll_issue("cluster", F_H); st["p2"] = poll_issue("pack", F_PACK2)
    def ev_chkH():
        poll_check(st["pH"]); st["hx"] = load_x(XB, HS, 10, 80, 0)
    kvu = []
    for tt in range(10):
        for mtx in range(2): kvu.append((xf(XA, 0, tt), xf(XA, 1, tt), 5*mtx))
    last = gemm(CKV, kvu, ACC, events={("post", 0): [ev_freephi], ("pre", 4): [ev_pubH_pre], ("post", 4): [ev_pubH],
                                       ("post", 8): [ev_pollH], ("post", 9): [ev_chkH]})
    stamp("kv")
    W3F = k.V(12, "W3F")
    def post_kvx():
        poll_check(st["p2"]); gates.add("pack2")
        touch(sJ100, PW_Q, 25); touch(sJ240, PW_3, 60)
        with nohook():
            e(f"""s_mul_i32 {sT[0]}, {sHK}, 122880
                  s_mul_i32 {sT[1]}, {sM}, 3072
                  s_add_u32 {sT[0]}, {sT[0]}, {sT[1]}
                  s_mul_i32 {sT[1]}, {sR}, 6144
                  s_add_u32 {sT[0]}, {sT[0]}, {sT[1]}
                  s_add_u32 {sT[0]}, {sT[0]}, {sJ240}
                  s_add_u32 {sT[0]}, {sT[0]}, {PW_3}
                  s_cmp_ge_u32 {sR}, 20
                  s_cselect_b32 {sT[0]}, {OOB}, {sT[0]}""")
            for i in range(3): st["w3f"] = k.vm(f"buffer_load_dwordx4 {W3F[4*i:4*i+4]}, {vL16}, {dWS}, {sT[0]} offen offset:{1024*i} sc1")
    exchange(ACC[40:80], ACC[0:40], last, post=post_kvx)
    def feature_map(src, PHI):
        Kp = k.V(12, "Kp"); p = k.V(20, "p"); en = k.V(20, "en"); mm = k.V(8, "mm")
        for i in range(10): e(f"v_cvt_pk_bf16_f32 {Kp[i]}, {src[2*i]}, {src[2*i+1]}")
        e(f"v_mov_b32 {Kp[10]}, 0\nv_mov_b32 {Kp[11]}, 0")
        for u in range(3):
            for tau in range(5):
                d = p[4*tau:4*tau+4]
                e(f"v_mfma_f32_16x16x32_bf16 {d}, {PH[(tau*3+u)*4:(tau*3+u)*4+4]}, {Kp[4*u:4*u+4]}, {'0' if u == 0 else d}")
        for i in range(10): e(f"v_cvt_pk_bf16_f32 {Kp[i]}, {p[2*i]}, {p[2*i+1]}")
        for i in range(10): e(f"v_lshlrev_b32 {p[2*i]}, 16, {Kp[i]}\nv_and_b32 {p[2*i+1]}, 0xffff0000, {Kp[i]}")
        e(f"v_max3_f32 {mm[0]}, {p[0]}, {p[1]}, {p[2]}\nv_min3_f32 {mm[2]}, {p[0]}, {p[1]}, {p[2]}")
        for i in range(3, 19, 2): e(f"v_max3_f32 {mm[0]}, {mm[0]}, {p[i]}, {p[i+1]}\nv_min3_f32 {mm[2]}, {mm[2]}, {p[i]}, {p[i+1]}")
        e(f"v_max_f32 {mm[0]}, {mm[0]}, {p[19]}\nv_min_f32 {mm[2]}, {mm[2]}, {p[19]}")
        e(f"v_mul_f32 {mm[0]}, {sL2E[0]}, {mm[0]}\nv_mul_f32 {mm[2]}, {sL2E[0]}, {mm[2]}")
        for i in range(10): e(f"v_pk_fma_f32 {en[2*i:2*i+2]}, {p[2*i:2*i+2]}, {sL2E}, {mm[2:4]} op_sel_hi:[1,1,0] neg_lo:[1,0,0] neg_hi:[1,0,0]")
        for i in range(10): e(f"v_pk_fma_f32 {p[2*i:2*i+2]}, {p[2*i:2*i+2]}, {sL2E}, {mm[0:2]} op_sel_hi:[1,1,0] neg_lo:[0,0,1] neg_hi:[0,0,1]")
        for i in range(20): e(f"v_exp_f32 {en[i]}, {en[i]}")
        for i in range(20): e(f"v_exp_f32 {p[i]}, {p[i]}")
        for (x, s) in ((p, mm[4:6]), (en, mm[6:8])):
            e(f"v_pk_add_f32 {s}, {x[0:2]}, {x[2:4]}")
        for i in range(2, 10):
            for (x, s) in ((p, mm[4:6]), (en, mm[6:8])): e(f"v_pk_add_f32 {s}, {s}, {x[2*i:2*i+2]}")
        e(f"v_add_f32 {mm[4]}, {mm[4]}, {mm[5]}\nv_add_f32 {mm[6]}, {mm[6]}, {mm[7]}\nv_rcp_f32 {mm[4]}, {mm[4]}\nv_rcp_f32 {mm[6]}, {mm[6]}")
        for (x, s, o) in ((p, mm[4:6], 0), (en, mm[6:8], 10)):
            for i in range(10): e(f"v_pk_mul_f32 {x[2*i:2*i+2]}, {x[2*i:2*i+2]}, {s} op_sel_hi:[1,0]")
            for i in range(10): e(f"v_cvt_pk_bf16_f32 {PHI[o+i]}, {x[2*i]}, {x[2*i+1]}")
        k.free(Kp, p, en, mm)
    PHK = k.V(20, "PHK"); VP = k.V(12, "VP")
    for i in range(10): e(f"v_cvt_pk_bf16_f32 {VP[i]}, {ACC[20+2*i]}, {ACC[21+2*i]}")
    e(f"v_mov_b32 {VP[10]}, 0x3f80\nv_mov_b32 {VP[11]}, 0")
    with lend(WB, ACC[20:80]): feature_map(ACC[0:20], PHK)
    stamp("phik")
    LPH = L_SCR; LV = L_SCR + 20480
    barrier()
    e(f"""s_lshl_b32 {sT[0]}, {sRF0}, 4
          v_add_u32 {t[0]}, {sT[0]}, {vS}
          v_lshl_add_u32 {t[0]}, {vG}, 6, {t[0]}
          v_mul_u32_u24 {t[1]}, 80, {t[0]}
          v_mul_u32_u24 {t[2]}, 48, {t[0]}
          v_add_u32 {t[1]}, {LPH}, {t[1]}
          v_add_u32 {t[2]}, {LV}, {t[2]}""")
    for u in range(5): k.ds(f"ds_write_b128 {t[1]}, {PHK[4*u:4*u+4]} offset:{16*u}")
    for u in range(3): k.ds(f"ds_write_b128 {t[2]}, {VP[4*u:4*u+4]} offset:{16*u}")
    e(f"""v_bfe_u32 {t[3]}, {vL}, 2, 2
          v_lshl_add_u32 {t[3]}, {vG}, 3, {t[3]}
          s_lshl_b32 {sT[0]}, {sW}, 6
          v_add_u32 {t[3]}, {sT[0]}, {t[3]}
          v_and_b32 {t[4]}, 3, {vL}
          v_lshlrev_b32 {t[4]}, 3, {t[4]}
          v_mov_b32 {t[5]}, 80
          v_mad_u32_u24 {t[5]}, {t[3]}, {t[5]}, {t[4]}
          v_mad_u32_u24 {t[6]}, {t[3]}, 48, {t[4]}
          v_add_u32 {t[5]}, {LPH}, {t[5]}
          v_add_u32 {t[6]}, {LV}, {t[6]}""")
    k.wait(ds=k.nds); barrier()
    FA = ACC[0:24]; FB = ACC[24:40]; KD = ACC[40:64]; CD = ACC[64:76]
    for sg in range(2):
        for a in range(3):
            for hi in range(2): k.ds(f"ds_read_b64_tr_b16 {FA[12*sg+4*a+2*hi:12*sg+4*a+2*hi+2]}, {t[5]} offset:{(32*sg + 4*hi)*80 + 32*a}")
        for b in range(2):
            for hi in range(2): k.ds(f"ds_read_b64_tr_b16 {FB[8*sg+4*b+2*hi:8*sg+4*b+2*hi+2]}, {t[6]} offset:{(32*sg + 4*hi)*48 + 32*b}")
        if sg == 0: k.wait(ds=k.nds - 5)
    k.wait(vm=st["w3f"])
    for i in range(3): e(f"v_mfma_f32_16x16x32_bf16 {CD[4*i:4*i+4]}, {W3F[4*i:4*i+4]}, {vONE}, 0")
    k.wait(ds=k.nds)
    for sg in range(2):
        for a in range(3):
            for b in range(2):
                d = KD[(a*2+b)*4:(a*2+b)*4+4]
                e(f"v_mfma_f32_16x16x32_bf16 {d}, {FA[12*sg+4*a:12*sg+4*a+4]}, {FB[8*sg+4*b:8*sg+4*b+4]}, {'0' if sg == 0 else d}")
    barrier()
    e(f"""s_mul_i32 {sT[0]}, {sW}, 3584
          s_add_u32 {sT[0]}, {sT[0]}, {L_SCR}
          v_mul_u32_u24 {t[0]}, 160, {vS}
          v_lshl_add_u32 {t[0]}, {vG}, 4, {t[0]}
          v_add_u32 {t[0]}, {sT[0]}, {t[0]}
          v_lshl_add_u32 {t[1]}, {vG}, 4, {sT[0]}
          v_add_u32 {t[2]}, {sT[0]}, {vL16}""")
    with nohook():
        for a in range(2): k.ds(f"ds_write_b128 {t[0]}, {KD[(a*2)*4:(a*2)*4+4]} offset:{64*a}")
        setexec(0xffffffff, 0); k.ds(f"ds_write_b128 {t[0]}, {KD[16:20]} offset:128")
        setexec(0x001f001f, 0x001f001f)
        for a in range(2): k.ds(f"ds_write_b128 {t[0]}, {KD[(a*2+1)*4:(a*2+1)*4+4]} offset:{2560 + 64*a}")
        setexec(0x001f001f, 0); k.ds(f"ds_write_b128 {t[0]}, {KD[20:24]} offset:{2560 + 128}")
        setexec(0x00010001, 0x00010001)
        for i in range(3): k.ds(f"ds_write_b128 {t[1]}, {CD[4*i:4*i+4]} offset:{3360 + 64*i}")
        e("s_mov_b64 exec, -1")
        k.wait(ds=k.nds)
        tk = [k.ds(f"ds_read_b128 {FA[4*i:4*i+4]}, {t[2]} offset:{1024*i}") for i in range(4)]
        e(f"""s_lshl_b32 {sT[0]}, {sJ}, 5
              s_add_u32 {sT[0]}, {sT[0]}, {sR}
              s_lshl_b32 {sT[0]}, {sT[0]}, 2
              s_add_u32 {sT[0]}, {sT[0]}, {sW}
              s_mul_i32 {sT[0]}, {sT[0]}, 3584
              s_add_u32 {sT[0]}, {sT[0]}, {KVP}""")
        for i in range(4):
            k.wait(ds=tk[i])
            if i == 3: setexec(0xffffffff, 0)
            tokKVP = k.vm(f"buffer_store_dwordx4 {FA[4*i:4*i+4]}, {vL16}, {dWS}, {sT[0]} offen offset:{1024*i} sc1")
        e("s_mov_b64 exec, -1\ns_nop 1")
    k.free(W3F, PHK, VP)
    stamp("kvp")
    def xw(toks): return lambda u: k.wait(vm=toks[(u, 1)])
    def ev_pubKVP_pre(): k.wait(vm=tokKVP)
    last = gemm(CW2, units80(XB), ACC[0:40], xwait=xw(st["hx"]),
                events={("pre", 4): [ev_pubKVP_pre], ("post", 4): [lambda: pub_col(F_KVP)]})
    stamp("w2")
    exchange(ACC[20:40], ACC[0:20], last)
    for i in range(10):
        e(f"v_lshlrev_b32 {ACC[20+2*i]}, 16, {RES[i]}\nv_and_b32 {ACC[21+2*i]}, 0xffff0000, {RES[i]}")
    for i in range(10): e(f"v_pk_add_f32 {ACC[2*i:2*i+2]}, {ACC[2*i:2*i+2]}, {ACC[20+2*i:22+2*i]}")
    for i in range(10): e(f"v_cvt_pk_bf16_f32 {RES[i]}, {ACC[2*i]}, {ACC[2*i+1]}\nv_mov_b32 {PK[i]}, {RES[i]}")
    tokX1 = store80(PK, X1)
    stamp("x1")
    GW = ACC[40:80]; GACC = k.V(8, "GACC")
    srd(dPK, pGATE, 1280)
    with nohook():
        e(f"v_lshlrev_b32 {t[0]}, 4, {vG}\ns_mul_i32 {sT[0]}, {sHK}, 640")
        gt = [k.vm(f"buffer_load_dwordx4 {GW[4*tt:4*tt+4]}, {t[0]}, {dPK}, {sT[0]} offen offset:{64*tt}") for tt in range(10)]
    def gate_extra(u, f, w):
        if f == 4:
            k.wait(vm=gt[u])
            for slot in range(2):
                d = GACC[4*slot:4*slot+4]
                e(f"v_mfma_f32_16x16x32_bf16 {d}, {GW[4*u:4*u+4]}, {xf(XA, slot, u)}, {'0' if u == 0 else d}")
    def ev_pubX1_pre(): k.wait(vm=tokX1)
    def ev_pollKVP(): st["pKVP"] = poll_issue("col", F_KVP)
    last = gemm(CQ, units80(XA), ACC[0:40], extra=gate_extra,
                events={("pre", 4): [ev_pubX1_pre], ("post", 4): [lambda: pub_cluster(F_X1), ev_pollKVP]})
    stamp("q")
    k.free(XA)
    GT = k.V(4, "GT")
    KR = k.V(16, "KR")
    def gx_pre():
        e(f"s_lshl_b32 {sT[0]}, {sW}, 7\ns_add_u32 {sT[0]}, {sT[0]}, {L_GX}\nv_lshl_add_u32 {t[0]}, {vS}, 3, {sT[0]}\nv_xor_b32 {t[1]}, 256, {t[0]}\nv_mov_b32 {GACC[1]}, {GACC[4]}")
        k.ds(f"ds_write_b64 {t[0]}, {GACC[0:2]}")
    def gx_post():
        st["gx"] = k.ds(f"ds_read_b64 {GACC[2:4]}, {t[1]}")
        poll_check(st["pKVP"])
        with nohook():
            e(f"""v_lshrrev_b32 {t[2]}, 5, {vL}
                  v_mul_u32_u24 {t[2]}, 14336, {t[2]}
                  v_and_b32 {t[3]}, 31, {vL}
                  v_lshl_add_u32 {t[2]}, {t[3]}, 4, {t[2]}
                  s_lshl_b32 {sT[0]}, {sJ}, 2
                  s_add_u32 {sT[0]}, {sT[0]}, {sW}
                  s_mul_i32 {sT[0]}, {sT[0]}, {8*14336}
                  s_mul_i32 {sT[1]}, {sR}, 448
                  s_add_u32 {sT[0]}, {sT[0]}, {sT[1]}
                  s_add_u32 {sT[0]}, {sT[0]}, {KVP}""")
            for i in range(4):
                st["kr"] = k.vm(f"buffer_load_dwordx4 {KR[4*i:4*i+4]}, {t[2]}, {dWS}, {sT[0]} offen sc1")
                e(f"s_add_u32 {sT[0]}, {sT[0]}, {2*14336}")
        st["pX1"] = poll_issue("cluster", F_X1)
    assert L_GX % 512 == 0
    exchange(ACC[20:40], ACC[0:20], last, pre=gx_pre, post=gx_post)
    k.wait(ds=st["gx"])
    e(f"""v_add_f32 {GT[0]}, {GACC[0]}, {GACC[3]}
          v_add_f32 {GT[2]}, {GACC[1]}, {GACC[2]}
          v_mul_f32 {GT[0]}, {sL2E[0]}, {GT[0]}
          v_mul_f32 {GT[2]}, {sL2E[0]}, {GT[2]}
          v_exp_f32 {GT[0]}, -{GT[0]}
          v_exp_f32 {GT[2]}, -{GT[2]}
          v_add_f32 {GT[0]}, 1.0, {GT[0]}
          v_add_f32 {GT[2]}, 1.0, {GT[2]}
          v_rcp_f32 {GT[0]}, {GT[0]}
          v_rcp_f32 {GT[2]}, {GT[2]}
          v_sub_f32 {GT[1]}, 1.0, {GT[0]}
          v_sub_f32 {GT[3]}, 1.0, {GT[2]}""")
    k.free(GACC)
    PHQ = k.V(20, "PHQ")
    with lend(WB, ACC[20:80]): feature_map(ACC[0:20], PHQ)
    k.free(PH)
    stamp("phiq")
    poll_check(st["pX1"]); x1t = load_x(XB, X1, 10, 80, 0)
    touch(sJ240, PW_4, 60); touch(sJ100, PW_O, 25)
    k.wait(vm=st["kr"])
    for h in range(2):
        e(f"v_pk_add_f32 {KR[2*h:2*h+2]}, {KR[2*h:2*h+2]}, {KR[4+2*h:6+2*h]}\nv_pk_add_f32 {KR[8+2*h:10+2*h]}, {KR[8+2*h:10+2*h]}, {KR[12+2*h:14+2*h]}")
    for h in range(2): e(f"v_pk_add_f32 {KR[2*h:2*h+2]}, {KR[2*h:2*h+2]}, {KR[8+2*h:10+2*h]}")
    for i in range(4): e(f"v_mov_b32 {KR[4+i]}, {KR[i]}")
    for i in range(4): e(f"v_permlane32_swap_b32 {KR[i]}, {KR[4+i]}")
    for h in range(2): e(f"v_pk_add_f32 {KR[2*h:2*h+2]}, {KR[2*h:2*h+2]}, {KR[4+2*h:6+2*h]}")
    LRED = L_SCR + 24576
    e(f"v_and_b32 {t[0]}, 31, {vL}\nv_lshlrev_b32 {t[0]}, 4, {t[0]}\nv_add_u32 {t[1]}, {LRED}, {t[0]}\ns_lshl_b32 {sT[0]}, {sW}, 9\nv_add_u32 {t[2]}, {sT[0]}, {t[1]}")
    k.ds(f"ds_write_b128 {t[2]}, {KR[0:4]}")
    k.wait(ds=k.nds); barrier()
    for i in range(4): k.ds(f"ds_read_b128 {KR[4*i:4*i+4]}, {t[1]} offset:{512*i}")
    k.wait(ds=k.nds)
    for h in range(2):
        e(f"v_pk_add_f32 {KR[2*h:2*h+2]}, {KR[2*h:2*h+2]}, {KR[4+2*h:6+2*h]}\nv_pk_add_f32 {KR[8+2*h:10+2*h]}, {KR[8+2*h:10+2*h]}, {KR[12+2*h:14+2*h]}")
    for h in range(2): e(f"v_pk_add_f32 {KR[2*h:2*h+2]}, {KR[2*h:2*h+2]}, {KR[8+2*h:10+2*h]}")
    with nohook():
        e(f"""s_lshl_b32 {sT[0]}, {sJ}, 5
              s_add_u32 {sT[0]}, {sT[0]}, {sR}
              s_lshl_b32 {sT[0]}, {sT[0]}, 9
              s_add_u32 {sT[0]}, {sT[0]}, {KVF}
              s_add_u32 {sT[0]}, {sT[0]}, {sW0}""")
        setexec(0xffffffff, 0)
        tokKVF = k.vm(f"buffer_store_dwordx4 {KR[0:4]}, {t[0]}, {dWS}, {sT[0]} offen sc1")
        e("s_mov_b64 exec, -1\ns_nop 1")
    stamp("kvred")
    vOA = k.V(6, "vOA")
    assert all((q*52) >> 8 == q//5 for q in range(20))
    e(f"v_bfe_u32 {t[0]}, {vL}, 2, 2\nv_and_b32 {t[1]}, 3, {vL}\nv_mul_u32_u24 {t[2]}, 1680, {vG}\nv_add_u32 {t[2]}, {L_KVT}, {t[2]}\nv_mov_b32 {t[3]}, {L_ZERO}")
    for tau in range(5):
        if tau < 4: e(f"v_lshlrev_b32 {t[4]}, 1, {t[0]}\nv_add_u32 {t[4]}, {8*(tau >> 1) + (tau & 1)}, {t[4]}")
        else: e(f"v_add_u32 {t[4]}, 16, {t[0]}")
        e(f"""v_mul_u32_u24 {t[5]}, 52, {t[4]}
              v_lshrrev_b32 {t[5]}, 8, {t[5]}
              v_cmp_eq_u32 vcc, {t[5]}, {vG}
              v_mul_u32_u24 {t[5]}, 5, {t[5]}
              v_sub_u32 {t[4]}, {t[4]}, {t[5]}
              v_lshl_add_u32 {t[4]}, {t[4]}, 2, {t[1]}
              v_mul_u32_u24 {t[4]}, 80, {t[4]}
              v_add_u32 {t[4]}, {t[4]}, {t[2]}
              v_cndmask_b32 {vOA[tau]}, {t[3]}, {t[4]}, vcc""")
    e(f"v_cmp_eq_u32 vcc, {t[1]}, {vG}\nv_add_u32 {t[4]}, 1600, {t[2]}\nv_cndmask_b32 {vOA[5]}, {t[3]}, {t[4]}, vcc")
    accS = ACC[48:56]; accQ = ACC[56:64]
    def st_extra(u, f, w):
        if f == 5:
            for slot in range(2):
                X = xf(XB, slot, u)
                e(f"v_mfma_f32_16x16x32_bf16 {accS[4*slot:4*slot+4]}, {vONE}, {X}, {'0' if u == 0 else accS[4*slot:4*slot+4]}")
                e(f"v_mfma_f32_16x16x32_bf16 {accQ[4*slot:4*slot+4]}, {X}, {X}, {'0' if u == 0 else accQ[4*slot:4*slot+4]}")
    def ev_pubKVF():
        k.wait(vm=tokKVF); pub_col(F_KVF)
    def ev_pollKVF(): st["pKVF"] = poll_issue("col", F_KVF)
    last = gemm(CW3[0], units80(XB), ACC[0:48], extra=st_extra, xwait=xw(x1t),
                events={("post", 1): [ev_pubKVF], ("post", 4): [ev_pollKVF]})
    stamp("w3a")
    def kvf_load():
        poll_check(st["pKVF"])
        with nohook():
            e(f"s_lshl_b32 {sT[0]}, {sJ}, 2\ns_add_u32 {sT[0]}, {sT[0]}, {sW}\ns_lshl_b32 {sT[0]}, {sT[0]}, 12\ns_add_u32 {sT[0]}, {sT[0]}, {KVF}")
            st["kf"] = [k.vm(f"buffer_load_dwordx4 {KR[4*i:4*i+4]}, {vL16}, {dWS}, {sT[0]} offen offset:{1024*i} sc1") for i in range(4)]
    exchange(ACC[24:48], ACC[0:24], last, pre=lambda: stats_write(accS, accQ), post=kvf_load)
    st2 = stats_read([0])[0]
    e(f"""v_lshrrev_b32 {t[0]}, 5, {vL}
          v_and_b32 {t[1]}, 31, {vL}
          v_mad_u32_u24 {t[0]}, {t[0]}, 28, {t[1]}
          s_mul_i32 {sT[0]}, {sW}, 1680
          s_add_u32 {sT[0]}, {sT[0]}, {L_KVT}
          v_lshl_add_u32 {t[0]}, {t[0]}, 3, {sT[0]}
          s_mul_i32 {sT[0]}, {sW}, 192
          s_add_u32 {sT[0]}, {sT[0]}, {L_CS - 14*16}
          v_lshl_add_u32 {t[1]}, {t[1]}, 4, {sT[0]}""")
    with nohook():
        for i in range(4):
            k.wait(vm=st["kf"][i])
            e(f"v_cvt_pk_bf16_f32 {t[2+2*(i&1)]}, {KR[4*i]}, {KR[4*i+1]}\nv_cvt_pk_bf16_f32 {t[3+2*(i&1)]}, {KR[4*i+2]}, {KR[4*i+3]}")
            setexec(0x0fffffff, 0x0fffffff if i < 3 else 0x3fff)
            k.ds(f"ds_write_b64 {t[0]}, {t[2+2*(i&1):4+2*(i&1)]} offset:{448*i}")
            e("s_mov_b64 exec, -1")
        setexec(0, 0x03ffc000)
        k.ds(f"ds_write_b128 {t[1]}, {KR[12:16]}")
        e("s_mov_b64 exec, -1")
    k.wait(ds=k.nds); barrier()
    k.free(KR)
    CS3 = WB[0:24]; HP = WB[24:36]
    vCSA = k.V(1, "vCSA")
    e(f"v_lshlrev_b32 {vCSA}, 4, {vG}\nv_add_u32 {vCSA}, {L_CS}, {vCSA}")
    def w3_epi(half):
        tk = [k.ds(f"ds_read_b128 {CS3[4*f:4*f+4]}, {vCSA} offset:{(6*half + f)*64}") for f in range(6)]
        for f in range(6):
            k.wait(ds=tk[f])
            for h in range(2):
                d = ACC[4*f+2*h:4*f+2*h+2]
                e(f"v_pk_fma_f32 {d}, {CS3[4*f+2*h:4*f+2*h+2]}, {st2[0]}, {d} op_sel_hi:[1,0,1]")
        gelu(ACC[0:24], st2[1], HP)
        with nohook():
            e(f"s_mul_i32 {sT[0]}, {sXB0}, 49152\ns_mul_i32 {sT[1]}, {sJ}, 3072\ns_add_u32 {sT[0]}, {sT[0]}, {sT[1]}\ns_add_u32 {sT[0]}, {sT[0]}, {H2 + 24576*half}")
            for a in range(3): tok = k.vm(f"buffer_store_dwordx4 {HP[4*a:4*a+4]}, {vL16}, {dWS}, {sT[0]} offen offset:{1024*a} sc1")
            e("s_nop 1")
        return tok
    tokH2A = w3_epi(0)
    stamp("h2a")
    OA = ACC[24:48]; DD = ACC[48:56]
    NUM = ACC[0:24]
    for u in range(5):
        tk = [k.ds(f"ds_read_b128 {OA[4*tau:4*tau+4]}, {vOA[tau]} offset:{16*u}") for tau in range(6)]
        for tau in range(6):
            k.wait(ds=tk[tau])
            d = NUM[4*tau:4*tau+4]
            e(f"v_mfma_f32_16x16x32_bf16 {d}, {OA[4*tau:4*tau+4]}, {PHQ[4*u:4*u+4]}, {'0' if u == 0 else d}")
    def rnd_pairs(x, n, tmp):
        for i in range(n//2): e(f"v_cvt_pk_bf16_f32 {tmp[i]}, {x[2*i]}, {x[2*i+1]}")
        for i in range(n//2): e(f"v_lshlrev_b32 {x[2*i]}, 16, {tmp[i]}\nv_and_b32 {x[2*i+1]}, 0xffff0000, {tmp[i]}")
    rnd_pairs(NUM, 24, OA)
    DEN = NUM[20:24]
    for r in range(4): e(f"v_add_f32 {DEN[r]}, {hex(f2u(1e-6))}, {DEN[r]}")
    rnd_pairs(DEN, 4, OA)
    for r in range(4): e(f"v_rcp_f32 {DEN[r]}, {DEN[r]}")
    setvcc(0, 0xffffffff); e(f"v_cndmask_b32 {DD[2]}, {DEN[0]}, {DEN[1]}, vcc")
    setvcc(0xffff, 0); e(f"v_cndmask_b32 {DD[4]}, {DEN[2]}, {DEN[1]}, vcc")
    setvcc(0, 0xffff0000); e(f"v_cndmask_b32 {DD[0]}, {DEN[0]}, {DEN[1]}, vcc\nv_cndmask_b32 {DD[6]}, {DD[4]}, {DEN[3]}, vcc\nv_mov_b32 {DEN[0]}, {DEN[3]}")
    for tau in range(5):
        s = DD[2*tau:2*tau+2] if tau < 4 else DEN[0:2]
        for h in range(2): e(f"v_pk_mul_f32 {NUM[4*tau+2*h:4*tau+2*h+2]}, {NUM[4*tau+2*h:4*tau+2*h+2]}, {s} op_sel_hi:[1,0]")
    for i in range(10): e(f"v_cvt_pk_bf16_f32 {PK[i]}, {NUM[2*i]}, {NUM[2*i+1]}")
    tokO = store80(PK, OO)
    k.free(PHQ, vOA)
    stamp("o")
    HA = k.A(96, "H2A"); XO = k.A(80, "XO")
    def ev_pubA_pre(): k.wait(vm=tokO)
    def ev_pubA(): pub_cluster(F_H2A); pub_cluster(F_O)
    last = gemm(CW3[1], units80(XB), ACC[0:48], events={("pre", 3): [ev_pubA_pre], ("post", 3): [ev_pubA]})
    stamp("w3b")
    k.free(XB)
    def pollAO(): st["pA"] = poll_issue("cluster", F_H2A); st["pO"] = poll_issue("cluster", F_O)
    def chkAO():
        poll_check(st["pA"]); st["ha"] = load_x(HA, H2, 12, 192, 0)
    exchange(ACC[24:48], ACC[0:24], last, pre=pollAO, post=chkAO)
    tokH2B = w3_epi(1)
    poll_check(st["pO"]); ot = load_x(XO, OO, 10, 80, 0)
    k.free(vCSA, *st2)
    stamp("h2b")
    ACB = ACC[0:40]; ACA = ACC[40:80]
    def ev_pubB_pre(): k.wait(vm=tokH2B)
    last = gemm(CW4[0], units80(HA, n=12), ACB, xwait=xw(st["ha"]), events={("pre", 3): [ev_pubB_pre], ("post", 3): [lambda: pub_cluster(F_H2B)]})
    stamp("w4a")
    lastA = last
    HB = k.A(96, "H2B") if False else None
    def ev_freeA(): lds.free(lastA)
    def ev_pollB(): st["pB"] = poll_issue("cluster", F_H2B)
    HBv = k.V(16, "HBv"); HBa = k.A(80, "HBa")
    class HBr:
        n = 96
        def __getitem__(s, i): return HBa[i.start:i.stop] if i.stop <= 80 else HBv[i.start-80:i.stop-80]
    HB = HBr()
    def ev_chkB(): poll_check(st["pB"]); st["hb"] = load_x(HB, H2, 12, 192, 24)
    last = gemm(CO, units80(XO), ACA, xwait=xw(ot), events={("post", 0): [ev_freeA], ("post", 3): [ev_pollB], ("post", 4): [ev_chkB]})
    stamp("wo")
    lastO = last
    last = gemm(CW4[1], units80(HB, n=12), ACB, first_zero=False, xwait=xw(st["hb"]), events={("post", 0): [lambda: lds.free(lastO)]})
    stamp("w4b")
    k.hook = None
    for slot in range(2):
        for i in range(10):
            b = ACB[20*slot+2*i:20*slot+2*i+2]
            e(f"v_pk_mul_f32 {b}, {b}, {GT[2*slot:2*slot+2]} op_sel:[0,1] op_sel_hi:[1,1]")
        for i in range(10):
            b = ACB[20*slot+2*i:20*slot+2*i+2]; a = ACA[20*slot+2*i:20*slot+2*i+2]
            e(f"v_pk_fma_f32 {b}, {a}, {GT[2*slot:2*slot+2]}, {b} op_sel_hi:[1,0,1]")
    for i in range(10):
        e(f"v_lshlrev_b32 {ACA[2*i]}, 16, {RES[i]}\nv_and_b32 {ACA[2*i+1]}, 0xffff0000, {RES[i]}")
    for i in range(10):
        b = ACB[2*i:2*i+2]
        e(f"v_pk_fma_f32 {b}, {ACA[2*i:2*i+2]}, {GT[0:2]}, {b} op_sel:[0,1,0] op_sel_hi:[1,1,1]")
    exchange(ACB[20:40], ACB[0:20], last)
    for i in range(10): e(f"v_cvt_pk_bf16_f32 {PK[i]}, {ACB[2*i]}, {ACB[2*i+1]}")
    LF = L_SCR + 24576
    e(f"""s_mul_i32 {sT[0]}, {sW}, 2560
          s_add_u32 {sT[0]}, {sT[0]}, {LF}
          v_mul_u32_u24 {t[0]}, 160, {vS}
          v_add_u32 {t[0]}, {sT[0]}, {t[0]}
          v_lshl_add_u32 {t[1]}, {vG}, 4, {t[0]}
          v_lshl_add_u32 {t[0]}, {vG}, 3, {t[0]}
          v_add_u32 {t[2]}, {sT[0]}, {vL16}""")
    k.ds(f"ds_write_b128 {t[1]}, {PK[0:4]}"); k.ds(f"ds_write_b128 {t[1]}, {PK[4:8]} offset:64"); k.ds(f"ds_write_b64 {t[0]}, {PK[8:10]} offset:128")
    srd(dX, pOUT, SZACT)
    for i in range(3):
        e(f"""v_add_u32 {t[6]}, {64*i}, {vL}
              v_mul_u32_u24 {t[7]}, 6554, {t[6]}
              v_lshrrev_b32 {t[7]}, 16, {t[7]}
              v_mul_u32_u24 {t[3+i]}, 10, {t[7]}
              v_sub_u32 {t[6]}, {t[6]}, {t[3+i]}
              v_mul_u32_u24 {t[7]}, 1280, {t[7]}
              v_lshl_add_u32 {t[3+i]}, {t[6]}, 4, {t[7]}""")
    e(f"s_lshl_b32 {sT[0]}, {sXB0}, 4\ns_mul_i32 {sT[0]}, {sT[0]}, 1280\ns_mul_i32 {sT[1]}, {sJ}, 160\ns_add_u32 {sT[0]}, {sT[0]}, {sT[1]}")
    k.wait(ds=k.nds)
    tk = [k.ds(f"ds_read_b128 {PK[4*i:4*i+4]}, {t[2]} offset:{1024*i}") for i in range(3)]
    for i in range(3):
        k.wait(ds=tk[i])
        if i == 2: setexec(0xffffffff, 0)
        k.vm(f"buffer_store_dwordx4 {PK[4*i:4*i+4]}, {t[3+i]}, {dX}, {sT[0]} offen")
    e("s_mov_b64 exec, -1")
    e(f"s_cmp_eq_u32 s2, 0\ns_cselect_b32 {sT[0]}, {sW0}, {OOB}\ns_mov_b64 exec, 1")
    k.vm(f"buffer_store_dword {vTAG}, {vZ}, {dWS}, {sT[0]} offen sc1")
    e("s_mov_b64 exec, -1")
    if cfg.stamps:
        e("s_waitcnt lgkmcnt(0)")
        stamp("end")
        e("s_waitcnt vmcnt(0) lgkmcnt(0)")
        stamp("drain")
        e("s_waitcnt lgkmcnt(0)")
        stamp("x")
        e(f"s_lshl_b32 {sT[0]}, s2, 2\ns_add_u32 {sT[0]}, {sT[0]}, {sW}\ns_lshl_b32 {sT[0]}, {sT[0]}, 8\ns_add_u32 {sT[0]}, {sT[0]}, {STAMPS}\nv_lshlrev_b32 {t[0]}, 2, {vL}")
        k.vm(f"buffer_store_dword {stamp.v}, {t[0]}, {dWS}, {sT[0]} offen")
    e("Lend:\ns_endpgm")
    for tkn in tail: e(tkn)
    e("s_endpgm")
    body, nn = hazard_pass(k.lines)
    info = dict(v=k.v.hi, a=k.a.hi, s=k.s.hi, nops=nn, lines=len(body), cyc=k.cyc, stamps=[n for n, _ in stamp_regs])
    return body, info

HEADER = open("gated_mix__linear_kernel_hedgehog__mixer_s_mlp__prompt.s.ref").read().split("; Override launch")[0]
def emit(cfg, path):
    import subprocess
    emit1(cfg, path, 1000)
    subprocess.check_call(["clang", "-x", "assembler", "-target", "amdgcn-amd-amdhsa", "-mcpu=gfx950", "-c", path, "-o", path + ".o"])
    out = subprocess.check_output(["llvm-objdump", "-h", path + ".o"], text=True)
    size = int([l for l in out.splitlines() if " .text " in l][0].split()[2], 16)
    info = emit1(cfg, path, size - 4096); info["code"] = size
    return info
def emit1(cfg, path, code_bytes):
    body, info = build(cfg)
    body = [l.replace("CODE_BYTES", str(code_bytes)) for l in body]
    s = HEADER + f"; @launch grid=(256,1,1) block=(256,1,1) lds={LDS_SIZE}\n"
    s += f'.amdgcn_target "amdgcn-amd-amdhsa--gfx950"\n.text\n.globl {NAME}\n.p2align 8\n.type {NAME},@function\n{NAME}:\n'
    s += "\n".join(body) + "\n"
    s += f'''.section .rodata,"a"
.p2align 6
.amdhsa_kernel {NAME}
  .amdhsa_next_free_vgpr 512
  .amdhsa_next_free_sgpr 102
  .amdhsa_accum_offset 256
  .amdhsa_group_segment_fixed_size 0
  .amdhsa_kernarg_size 104
  .amdhsa_user_sgpr_count 2
  .amdhsa_user_sgpr_kernarg_segment_ptr 1
  .amdhsa_system_sgpr_workgroup_id_x 1
.end_amdhsa_kernel
'''
    open(path, "w").write(s)
    return info

if __name__ == "__main__":
    cfg = Cfg()
    out = sys.argv[1] if len(sys.argv) > 1 else "mk.s"
    for a in sys.argv[2:]:
        kx, vx = a.split("="); setattr(cfg, kx, eval(vx))
    info = emit(cfg, out); print(info)
    open(out + ".names", "w").write(repr(info["stamps"]))
```
